```python
import torch

def _softmax(x, axis=-1):
    return torch.softmax(x, dim=axis)

def _gelu(x):
    return torch.nn.functional.gelu(x, approximate='tanh')

def _silu(x):
    return torch.nn.functional.silu(x)

def _sigmoid(x):
    return torch.sigmoid(x)

def _layernorm(x, axis=-1, eps=1e-05):
    m = x.mean(dim=axis, keepdim=True)
    v = x.var(dim=axis, keepdim=True, unbiased=False)
    return (x - m) / torch.sqrt(v + eps)

def _scatter_add(tgt, idx, src, axis=0):
    return tgt.clone().index_add_(axis, idx, src)

def _segment_sum(src, seg, n):
    out = torch.zeros((n,) + src.shape[1:], dtype=src.dtype)
    return out.index_add_(0, seg, src)

def _pad(x, pw):
    flat = tuple((v for pair in reversed(pw) for v in pair))
    return torch.nn.functional.pad(x, flat)
kernel_name = 'standalone__tree_speculative_verify_tree_attention_over_candidate_token_tree__sampling'

def setup_inputs():

    _w = lambda a: (lambda t: t.to(torch.bfloat16) if t.is_floating_point() else t)(torch.as_tensor(a))
    B, Hq, Hkv, T, C, D = (32, 32, 4, 32, 2048, 128)
    tree_mask = torch.zeros((B, T, T), dtype=float)
    for b in range(B):
        parent = torch.zeros(T, dtype=torch.int64)
        for i in range(1, T):
            parent[i] = int(torch.randint(0, i, (1,)).item())
        for i in range(T):
            j = i
            tree_mask[b, i, j] = 1.0
            while j > 0:
                j = parent[j]
                tree_mask[b, i, j] = 1.0
    return {'q': _w((lambda *s: torch.randn(*s, dtype=torch.bfloat16) * 0.8)(B, Hq, T, D)), 'k_cache': _w((lambda *s: torch.randn(*s, dtype=torch.bfloat16) * 0.8)(B, Hkv, C, D)), 'v_cache': _w((lambda *s: torch.randn(*s, dtype=torch.bfloat16) * 0.05)(B, Hkv, C, D)), 'k_tree': _w((lambda *s: torch.randn(*s, dtype=torch.bfloat16) * 0.8)(B, Hkv, T, D)), 'v_tree': _w((lambda *s: torch.randn(*s, dtype=torch.bfloat16) * 0.05)(B, Hkv, T, D)), 'tree_mask': _w(tree_mask)}

def reference(q, k_cache, v_cache, k_tree, v_tree, tree_mask):
    B, Hq, T, D = q.shape
    Hkv, C = (k_cache.shape[1], k_cache.shape[2])
    rep = Hq // Hkv
    kc = (lambda x, n, axis: torch.repeat_interleave(x, n, dim=axis))(k_cache, rep, axis=1)
    vc = (lambda x, n, axis: torch.repeat_interleave(x, n, dim=axis))(v_cache, rep, axis=1)
    kt = (lambda x, n, axis: torch.repeat_interleave(x, n, dim=axis))(k_tree, rep, axis=1)
    vt = (lambda x, n, axis: torch.repeat_interleave(x, n, dim=axis))(v_tree, rep, axis=1)
    k = torch.concatenate([kc, kt], axis=2)
    v = torch.concatenate([vc, vt], axis=2)
    scale = D ** (-0.5)
    scores = torch.einsum('bhqd,bhkd->bhqk', q, k) * scale
    ctx_mask = torch.ones((B, 1, T, C), dtype=scores.dtype)
    tm = tree_mask[:, None, :, :].clone()
    full_mask = torch.concatenate([ctx_mask, tm], axis=-1)
    scores = scores + (1.0 - full_mask) * -1000000000.0
    p = _softmax(scores, axis=-1)
    return torch.einsum('bhqk,bhkd->bhqd', p, v)
```

```python
import sys, struct, argparse

KNAME = "standalone__tree_speculative_verify_tree_attention_over_candidate_token_tree__sampling_kernel"
HEADER = open("standalone__tree_speculative_verify_tree_attention_over_candidate_token_tree__sampling.s.ref").read().split("; Override launch")[0]


def f32bits(x):
    return struct.unpack("<I", struct.pack("<f", x))[0]


V_TMP = 0
V_OA = 64
V_SA, V_SB = 128, 144
V_CA, V_CB = 160, 176
V_PA, V_PB = 192, 200
V_EA, V_EB = 208, 212
V_TA, V_TB = 216, 217
V_LA, V_LB = 218, 219
V_MA, V_MB = 220, 221
V_LANE = 222
V_KA = 224
V_VA = 232
V_DK = 236
V_DV = 240
V_SL = 242
V_BIAS = 32
A_OB = 0
A_QA, A_QB = 64, 96
A_KF = 128
A_VF = 160
A_VT = 192
A_KT = 224
S_K, S_V, S_Q, S_KT, S_VT, S_M, S_O = 20, 24, 28, 32, 36, 40, 44
S_W, S_I, S_J = 48, 49, 50
S_KOFF, S_VOFF = 51, 52
S_WB = 53
S_LOOP = 54
S_THR = {"A": 55, "B": 56}
S_FLOOR = {"A": 57, "B": 58}
S_RET = 60
S_T0, S_T1, S_T2, S_T3 = 62, 63, 64, 65
S_BH, S_QH = 66, 67
S_C = 68
S_PC = 70

LDS_V = 65536
LDS_KT = 131072
LDS_VT = 147456
THR = 16384.0
SCALE = (128 ** -0.5) * 1.4426950408889634


class Gen:
    def __init__(self, nt=True, debug=False, code_pf=True, stamps=False):
        self.L = []
        self.nt = " nt" if nt else ""
        self.debug = debug
        self.code_pf = code_pf
        self.uid = 0
        self.stubs = []
        self.stamps = stamps
        self.nstamp = 0

    def e(self, s):
        self.L.append("  " + s)

    def label(self, s):
        self.L.append(s + ":")

    def c(self, s):
        self.L.append("  ; " + s)

    def stamp(self):
        if self.stamps:
            k = self.nstamp
            self.nstamp += 1
            assert k < 14
            self.e(f"s_memtime s[{72+2*k}:{73+2*k}]")

    def blk(self, X):
        if X == "A":
            return dict(S=V_SA, C=V_CA, P=V_PA, E=V_EA, T=V_TA, L=V_LA, M=V_MA, Q=A_QA)
        return dict(S=V_SB, C=V_CB, P=V_PB, E=V_EB, T=V_TB, L=V_LB, M=V_MB, Q=A_QB)

    def qk_mfmas(self, X, kf=A_KF, cin=None):
        r = self.blk(X)
        S, Q = r["S"], r["Q"]
        C = r["C"] if cin is None else cin
        out = []
        for ks in range(8):
            c = f"v[{C}:{C+15}]" if ks == 0 else f"v[{S}:{S+15}]"
            out.append(f"v_mfma_f32_32x32x16_bf16 v[{S}:{S+15}], a[{kf+4*ks}:{kf+4*ks+3}], a[{Q+4*ks}:{Q+4*ks+3}], {c}")
        return out

    def pv_mfmas(self, X, vf=A_VF):
        r = self.blk(X)
        P = r["P"]
        out = []
        for t in range(2):
            for d in range(4):
                f = vf + 4 * (4 * t + d)
                if X == "A":
                    o = f"v[{V_OA+16*d}:{V_OA+16*d+15}]"
                else:
                    o = f"a[{A_OB+16*d}:{A_OB+16*d+15}]"
                out.append(f"v_mfma_f32_32x32x16_bf16 {o}, a[{f}:{f+3}], v[{P+4*t}:{P+4*t+3}], {o}")
        return out

    def sm_stream(self, X):
        r = self.blk(X)
        S, P, E, T, Lr = r["S"], r["P"], r["E"], r["T"], r["L"]
        steps = []
        for e in range(16):
            st = [f"v_exp_f32 v{E+e%4}, v{S+e}"]
            if e == 2:
                st.append(f"v_add_f32 v{T}, v{E+0}, v{E+1}")
            elif e > 2:
                st.append(f"v_add_f32 v{T}, v{T}, v{E+(e-1)%4}")
            if e >= 2 and e % 2 == 0:
                st.append(f"v_cvt_pk_bf16_f32 v{P+(e-2)//2}, v{E+(e-2)%4}, v{E+(e-1)%4}")
            steps.append(st)
        steps.append([f"v_add_f32 v{T}, v{T}, v{E+15%4}", f"v_cvt_pk_bf16_f32 v{P+7}, v{E+14%4}, v{E+15%4}"])
        steps.append([f"v_cmp_nge_f32 vcc, s{S_THR[X]}, v{T}"])
        self.uid += 1
        u = self.uid
        self.stubs.append((u, X))
        steps.append([f"s_cbranch_vccnz L_stub{u}", f"L_back{u}:", f"v_add_f32 v{Lr}, v{Lr}, v{T}"])
        return steps

    def emit_line(self, s):
        if s.endswith(":"):
            self.label(s[:-1])
        else:
            self.e(s)

    def k_read(self, ks, slot, dst=A_KF, addr=None, off=None):
        a = V_KA + ks if addr is None else addr
        o = slot * 16384 if off is None else off
        return f"ds_read_b128 a[{dst+4*ks}:{dst+4*ks+3}], v{a} offset:{o}"

    def v_reads(self, t, d, slot, dst=A_VF, addr=None, off=None):
        a = V_VA + d if addr is None else addr
        o = slot * 16384 if off is None else off
        f = dst + 4 * (4 * t + d)
        return [f"ds_read_b64_tr_b16 a[{f}:{f+1}], v{a} offset:{o+t*4096}",
                f"ds_read_b64_tr_b16 a[{f+2}:{f+3}], v{a} offset:{o+t*4096+2048}"]

    def dma_k(self, q, soff=S_KOFF, srd=S_K, v=None):
        vv = V_DK + q if v is None else v
        return f"buffer_load_dwordx4 v{vv}, s[{srd}:{srd+3}], s{soff} offen offset:{q*1024}{self.nt} lds"

    def dma_v(self, q, soff=S_VOFF, srd=S_V, v=None):
        vv = V_DV if v is None else v
        return f"buffer_load_dwordx4 v{vv}, s[{srd}:{srd+3}], s{soff} offen offset:{q*1024}{self.nt} lds"

    def dma_k_stage(self, slot):
        self.e(f"s_add_u32 m0, s{S_WB}, {slot*16384}")
        self.e("s_nop 0")
        for q in range(4):
            self.e(self.dma_k(q))
        self.e(f"s_add_u32 s{S_KOFF}, s{S_KOFF}, 16384")

    def dma_v_stage(self, slot):
        self.e(f"s_add_u32 m0, s{S_WB}, {LDS_V+slot*16384}")
        self.e("s_nop 0")
        for q in range(4):
            self.e(self.dma_v(q))
        self.e(f"s_add_u32 s{S_VOFF}, s{S_VOFF}, 16384")

    def emit_sched(self, mfmas, gaps, pre=None):
        pre = pre or {}
        n = len(mfmas)
        for k in range(n):
            for s in pre.get(k, []):
                self.emit_line(s)
            self.e(mfmas[k])
            for s in gaps.get(k, []):
                self.emit_line(s)
        for k in sorted(g for g in gaps if g >= n):
            for s in gaps[k]:
                self.emit_line(s)

    def iteration(self, m, smb_tail, qk=True, dma=True, vm=16, pva_vf=A_VF, kread=True, vread=True,
                  loop_end=None, barrier_gap=15):
        mm = m % 4
        self.c(f"---- iteration {m} (mod 4 = {mm})")
        gaps = {}
        pre = {}

        def put(g, s):
            gaps.setdefault(g, []).append(s)

        mf = []
        mf += self.qk_mfmas("A") if qk else []
        mf += self.pv_mfmas("A", pva_vf)
        mf += self.qk_mfmas("B") if qk else []
        mf += self.pv_mfmas("B")
        assert qk
        pre[0] = ["s_waitcnt lgkmcnt(15)"]
        pre[8] = ["s_waitcnt lgkmcnt(0)"]
        if smb_tail:
            for k, st in enumerate(smb_tail):
                for s in st:
                    put(k, s)
        sma = self.sm_stream("A")
        for k, st in enumerate(sma):
            for s in st:
                put(10 + k, s)
        smb = self.sm_stream("B")
        for k, st in enumerate(smb[:6]):
            for s in st:
                put(26 + k, s)
        tail = smb[6:]
        if dma:
            put(0, f"s_add_u32 m0, s{S_WB}, {(mm)*16384}")
            for q, g in enumerate((1, 3, 5, 7)):
                put(g, self.dma_k(q))
            put(8, f"s_add_u32 m0, s{S_WB}, {LDS_V+((mm+3)%4)*16384}")
            put(8, f"s_add_u32 s{S_KOFF}, s{S_KOFF}, 16384")
            for q, g in enumerate((9, 12, 13, 14)):
                put(g, self.dma_v(q))
            put(15, f"s_add_u32 s{S_VOFF}, s{S_VOFF}, 16384")
        put(barrier_gap, f"s_waitcnt vmcnt({vm})")
        put(barrier_gap, "s_barrier")
        if kread:
            for ks in range(8):
                put(16 + ks, self.k_read(ks, (mm + 2) % 4))
        if vread:
            for t in range(2):
                for d in range(4):
                    for s in self.v_reads(t, d, (mm + 1) % 4):
                        put(24 + 4 * t + d, s)
        if loop_end:
            for s in loop_end:
                put(31, s)
        self.emit_sched(mf, gaps, pre)
        return tail

    def slow_path(self, X):
        r = self.blk(X)
        S, C, P, T, Lr, M = r["S"], r["C"], r["P"], r["T"], r["L"], r["M"]
        t = V_SL
        self.label(f"L_slow{X}")
        e = self.e
        e(f"v_max3_f32 v{t}, v{S}, v{S+1}, v{S+2}")
        e(f"v_max3_f32 v{t+1}, v{S+3}, v{S+4}, v{S+5}")
        e(f"v_max3_f32 v{t+2}, v{S+6}, v{S+7}, v{S+8}")
        e(f"v_max3_f32 v{t+3}, v{S+9}, v{S+10}, v{S+11}")
        e(f"v_max3_f32 v{t+4}, v{S+12}, v{S+13}, v{S+14}")
        e(f"v_max3_f32 v{t}, v{t}, v{t+1}, v{S+15}")
        e(f"v_max3_f32 v{t+2}, v{t+2}, v{t+3}, v{t+4}")
        e(f"v_max_f32 v{t}, v{t}, v{t+2}")
        e(f"v_mov_b32 v{t+1}, v{t}")
        e("s_nop 1")
        e(f"v_permlane32_swap_b32 v{t}, v{t+1}")
        e("s_nop 1")
        e(f"v_max3_f32 v{t}, v{t}, v{t+1}, s{S_FLOOR[X]}")
        e(f"v_add_f32 v{M}, v{M}, v{t}")
        e(f"v_max_f32 v{t+1}, 0, v{t}")
        e(f"v_exp_f32 v{t+1}, -v{t+1}")
        e(f"v_sub_f32 v{t+2}, 0, v{M}")
        for i in range(16):
            e(f"v_mov_b32 v{C+i}, v{t+2}")
        e(f"v_mul_f32 v{Lr}, v{Lr}, v{t+1}")
        if X == "A":
            for i in range(64):
                e(f"v_mul_f32 v{V_OA+i}, v{V_OA+i}, v{t+1}")
        else:
            for i in range(0, 64, 4):
                for k in range(4):
                    e(f"v_accvgpr_read_b32 v{t+4+k}, a{A_OB+i+k}")
                for k in range(4):
                    e(f"v_mul_f32 v{t+4+k}, v{t+4+k}, v{t+1}")
                for k in range(4):
                    e(f"v_accvgpr_write_b32 a{A_OB+i+k}, v{t+4+k}")
        for i in range(0, 16, 4):
            for k in range(4):
                e(f"v_sub_f32 v{t+4+k}, v{S+i+k}, v{t}")
            for k in range(4):
                e(f"v_exp_f32 v{t+4+k}, v{t+4+k}")
            e("s_nop 0")
            if i == 0:
                e(f"v_add_f32 v{T}, v{t+4}, v{t+5}")
            else:
                e(f"v_add_f32 v{T}, v{T}, v{t+4}")
                e(f"v_add_f32 v{T}, v{T}, v{t+5}")
            e(f"v_add_f32 v{T}, v{T}, v{t+6}")
            e(f"v_add_f32 v{T}, v{T}, v{t+7}")
            e(f"v_cvt_pk_bf16_f32 v{P+i//2}, v{t+4}, v{t+5}")
            e(f"v_cvt_pk_bf16_f32 v{P+i//2+1}, v{t+6}, v{t+7}")
        e(f"s_mov_b32 s{S_FLOOR[X]}, 0")
        e(f"s_mov_b32 s{S_THR[X]}, {f32bits(THR):#x}")
        e("s_nop 1")
        e(f"s_setpc_b64 s[{S_RET}:{S_RET+1}]")

    def build(self):
        e = self.e
        L = self.L
        L.append(HEADER.rstrip())
        L.append("; @launch grid=(256,1,1) block=(256,1,1) lds=163840")
        L.append('.amdgcn_target "amdgcn-amd-amdhsa--gfx950"')
        L.append(".text")
        L.append(f".globl {KNAME}")
        L.append(".p2align 8")
        L.append(f".type {KNAME},@function")
        self.label(KNAME)
        self.stamp()
        e("s_cmp_ge_u32 s2, 256")
        e("s_cbranch_scc1 L_done")
        e("s_load_dwordx8 s[4:11], s[0:1], 0")
        e("s_load_dwordx4 s[12:15], s[0:1], 32")
        e("s_load_dwordx2 s[16:17], s[0:1], 48")
        if self.stamps:
            e("s_load_dwordx2 s[18:19], s[0:1], 64")
        e(f"s_getpc_b64 s[{S_PC}:{S_PC+1}]")
        e(f"v_lshrrev_b32 v1, 6, v0")
        e(f"v_and_b32 v{V_LANE}, 63, v0")
        e("s_and_b32 s3, s2, 7")
        e(f"v_readfirstlane_b32 s{S_W}, v1")
        e(f"s_lshr_b32 s{S_BH}, s2, 4")
        e(f"s_lshl_b32 s{S_BH}, s{S_BH}, 3")
        e(f"s_add_u32 s{S_BH}, s{S_BH}, s3")
        e(f"s_lshr_b32 s{S_QH}, s2, 3")
        e(f"s_and_b32 s{S_QH}, s{S_QH}, 1")
        e(f"s_lshr_b32 s{S_I}, s{S_W}, 1")
        e(f"s_and_b32 s{S_J}, s{S_W}, 1")
        e(f"s_lshl_b32 s{S_WB}, s{S_W}, 12")
        ln = V_LANE
        e(f"v_lshrrev_b32 v1, 4, v{ln}")
        e(f"v_and_b32 v2, 15, v{ln}")
        e(f"v_lshlrev_b32 v3, 8, v1")
        e(f"v_add_u32 v3, s{S_WB}, v3")
        for q in range(4):
            e(f"v_add_u32 v4, {4*q}, v1")
            e(f"v_xor_b32 v4, v4, v2")
            e(f"v_lshl_add_u32 v{V_DK+q}, v4, 4, v3")
        e(f"v_lshlrev_b32 v4, 2, v1")
        e(f"v_xor_b32 v4, v4, v2")
        e(f"v_lshl_add_u32 v{V_DV}, v4, 4, v3")
        e("s_waitcnt lgkmcnt(0)")
        e(f"s_lshl_b32 s{S_T0}, s{S_BH}, 16")
        e(f"s_lshl_b32 s{S_T1}, s{S_QH}, 15")
        e(f"s_add_u32 s{S_T0}, s{S_T0}, s{S_T1}")
        e(f"s_add_u32 s{S_Q}, s4, s{S_T0}")
        e(f"s_addc_u32 s{S_Q+1}, s5, 0")
        e(f"s_mov_b32 s{S_Q+2}, 32768")
        e(f"s_mov_b32 s{S_Q+3}, 0x00020000")
        e(f"s_lshl_b32 s{S_T1}, s{S_BH}, 19")
        e(f"s_add_u32 s{S_K}, s6, s{S_T1}")
        e(f"s_addc_u32 s{S_K+1}, s7, 0")
        e(f"s_mov_b32 s{S_K+2}, 524288")
        e(f"s_mov_b32 s{S_K+3}, 0x00020000")
        e(f"s_add_u32 s{S_V}, s8, s{S_T1}")
        e(f"s_addc_u32 s{S_V+1}, s9, 0")
        e(f"s_mov_b32 s{S_V+2}, 524288")
        e(f"s_mov_b32 s{S_V+3}, 0x00020000")
        e(f"s_lshl_b32 s{S_T2}, s{S_I}, 16")
        e(f"s_lshl_b32 s{S_T3}, s{S_J}, 13")
        e(f"s_add_u32 s{S_T2}, s{S_T2}, s{S_T3}")
        e(f"s_add_u32 m0, s{S_T2}, 49152")
        e(f"s_add_u32 s{S_T3}, s{S_WB}, 4096")
        for q in range(4):
            e(self.dma_k(q, soff=S_WB, srd=S_Q))
        e(f"s_add_u32 m0, s{S_T2}, {49152+4096}")
        e(f"s_mov_b32 s{S_KOFF}, 0")
        for q in range(4):
            e(self.dma_k(q, soff=S_T3, srd=S_Q))
        e(f"s_mov_b32 s{S_VOFF}, 0")
        self.dma_k_stage(0)
        self.dma_v_stage(0)
        e(f"s_lshl_b32 s{S_T1}, s{S_BH}, 13")
        e(f"s_add_u32 s{S_KT}, s10, s{S_T1}")
        e(f"s_addc_u32 s{S_KT+1}, s11, 0")
        e(f"s_mov_b32 s{S_KT+2}, 8192")
        e(f"s_mov_b32 s{S_KT+3}, 0x00020000")
        e(f"s_add_u32 s{S_VT}, s12, s{S_T1}")
        e(f"s_addc_u32 s{S_VT+1}, s13, 0")
        e(f"s_mov_b32 s{S_VT+2}, 8192")
        e(f"s_mov_b32 s{S_VT+3}, 0x00020000")
        e(f"s_lshr_b32 s{S_T1}, s{S_BH}, 2")
        e(f"s_lshl_b32 s{S_T1}, s{S_T1}, 11")
        e(f"s_add_u32 s{S_M}, s14, s{S_T1}")
        e(f"s_addc_u32 s{S_M+1}, s15, 0")
        e(f"s_mov_b32 s{S_M+2}, 2048")
        e(f"s_mov_b32 s{S_M+3}, 0x00020000")
        e(f"s_add_u32 s{S_O}, s16, s{S_T0}")
        e(f"s_addc_u32 s{S_O+1}, s17, 0")
        e(f"s_mov_b32 s{S_O+2}, 32768")
        e(f"s_mov_b32 s{S_O+3}, 0x00020000")
        e(f"s_lshl_b32 s{S_T1}, s{S_I}, 13")
        e(f"s_mov_b32 s{S_T3}, 0")
        for q in range(4):
            e(f"v_subrev_u32 v{8+q}, s{S_T1}, v{V_DK+q}")
        e(f"v_subrev_u32 v12, s{S_T1}, v{V_DV}")
        e(f"s_add_u32 m0, s{S_WB}, {LDS_KT}")
        e("s_nop 0")
        for q in range(4):
            e(self.dma_k(q, soff=S_T3, srd=S_KT, v=8 + q))
        e(f"s_add_u32 m0, s{S_WB}, {LDS_VT}")
        e("s_nop 0")
        for q in range(4):
            e(self.dma_v(q, soff=S_T3, srd=S_VT, v=12))
        e(f"v_and_b32 v5, 31, v{ln}")
        e(f"v_lshrrev_b32 v6, 5, v{ln}")
        e(f"v_lshlrev_b32 v7, 6, v5")
        e(f"v_lshl_add_u32 v7, v6, 3, v7")
        for g in range(4):
            e(f"buffer_load_dwordx2 v[{16+2*g}:{17+2*g}], v7, s[{S_M}:{S_M+3}], 0 offen offset:{16*g}")
        nvm_after_mask = 0
        self.dma_k_stage(1)
        self.dma_v_stage(1)
        self.dma_k_stage(2)
        self.dma_v_stage(2)
        nvm_after_mask += 16
        if self.code_pf:
            e(f"v_lshlrev_b32 v13, 4, v0")
            for k in range(4):
                e(f"global_load_dwordx4 v[24:27], v13, s[{S_PC}:{S_PC+1}]")
                e(f"v_add_u32 v13, 0x1000, v13")
            nvm_after_mask += 4
        total_vm = 8 + 4 + 4 + 4 + 4 + 4 + nvm_after_mask
        e(f"s_lshl_b32 s{S_T1}, s{S_J}, 13")
        e(f"v_lshlrev_b32 v8, 8, v5")
        e(f"v_add_u32 v8, s{S_T1}, v8")
        e(f"v_xor_b32 v9, v6, v2")
        for ks in range(8):
            e(f"v_xor_b32 v10, {2*ks}, v9")
            e(f"v_lshl_add_u32 v{V_KA+ks}, v10, 4, v8")
        e(f"v_lshrrev_b32 v9, 2, v2")
        e(f"v_lshl_add_u32 v10, v6, 2, v9")
        e(f"v_lshlrev_b32 v10, 8, v10")
        e(f"s_add_u32 s{S_T1}, s{S_T1}, {LDS_V}")
        e(f"v_add_u32 v10, s{S_T1}, v10")
        e(f"v_and_b32 v11, 1, v1")
        e(f"v_lshl_add_u32 v10, v11, 5, v10")
        e(f"v_and_b32 v11, 3, v{ln}")
        e(f"v_lshl_add_u32 v10, v11, 3, v10")
        for d in range(4):
            e(f"v_xor_b32 v11, {d}, v9")
            e(f"v_lshl_add_u32 v{V_VA+d}, v11, 6, v10")
        for X in "AB":
            r = self.blk(X)
            for i in range(16):
                e(f"v_mov_b32 v{r['C']+i}, 0")
            e(f"v_mov_b32 v{r['L']}, 0")
            e(f"v_mov_b32 v{r['M']}, 0")
            e(f"s_mov_b32 s{S_THR[X]}, {f32bits(-1.0):#x}")
            e(f"s_mov_b32 s{S_FLOOR[X]}, 0xff800000")
        for i in range(64):
            e(f"v_mov_b32 v{V_OA+i}, 0")
        for i in range(64):
            e(f"v_accvgpr_write_b32 a{A_OB+i}, 0")
        e(f"s_mov_b32 s{S_C}, {f32bits(SCALE):#x}")
        e(f"s_mov_b32 s{S_C+1}, {f32bits(SCALE):#x}")
        e(f"s_lshl_b32 s{S_T1}, s{S_I}, 16")
        e(f"s_add_u32 s{S_T1}, s{S_T1}, 49152")
        e(f"s_lshl_b32 s{S_T2}, s{S_J}, 14")
        e(f"s_sub_u32 s{S_T2}, s{S_T1}, s{S_T2}")
        e(f"s_add_u32 s{S_T2}, s{S_T2}, 8192")
        for ks in range(8):
            e(f"v_add_u32 v{48+ks}, s{S_T1}, v{V_KA+ks}")
            e(f"v_add_u32 v{56+ks}, s{S_T2}, v{V_KA+ks}")
        self.stamp()
        e(f"s_waitcnt vmcnt({total_vm-8})")
        e("s_barrier")
        self.stamp()
        for X, ab in (("A", 48), ("B", 56)):
            Q = self.blk(X)["Q"]
            for ks in range(8):
                e(f"ds_read_b128 v[{128+4*ks}:{128+4*ks+3}], v{ab+ks}")
            for ks in range(8):
                e(f"s_waitcnt lgkmcnt({7-ks})")
                for k in range(4):
                    src = 128 + 4 * ks + k
                    t = 192 + 2 * k
                    e(f"v_lshlrev_b32 v{t}, 16, v{src}")
                    e(f"v_and_b32 v{t+1}, 0xffff0000, v{src}")
                for k in range(4):
                    t = 192 + 2 * k
                    e(f"v_pk_mul_f32 v[{t}:{t+1}], v[{t}:{t+1}], s[{S_C}:{S_C+1}]")
                for k in range(4):
                    t = 192 + 2 * k
                    e(f"v_cvt_pk_bf16_f32 v{200+k}, v{t}, v{t+1}")
                for k in range(4):
                    e(f"v_accvgpr_write_b32 a{Q+4*ks+k}, v{200+k}")
        self.stamp()
        e(f"s_waitcnt vmcnt({total_vm-12})")
        e("s_barrier")
        self.dma_k_stage(3)
        total_vm += 4
        for ks in range(8):
            e(self.k_read(ks, 0))
        e("s_waitcnt lgkmcnt(0)")
        mf = self.qk_mfmas("A") + self.qk_mfmas("B")
        gaps = {}
        for k, st in enumerate(self.sm_stream("A")):
            gaps.setdefault(10 + k // 2, []).extend(st + (["s_nop 0"] if k % 2 == 0 else []))
        self.emit_sched(mf, gaps)
        e(f"s_waitcnt vmcnt({total_vm-28-4})")
        e("s_barrier")
        self.stamp()
        for ks in range(8):
            e(f"v_add_u32 v{48+ks}, {LDS_KT}, v{V_KA+ks}")
        for d in range(4):
            e(f"v_add_u32 v{56+d}, {LDS_VT-LDS_V}, v{V_VA+d}")
        for ks in range(8):
            e(self.k_read(ks, 0, dst=A_KT, addr=48 + ks, off=0))
        for t in range(2):
            for d in range(4):
                for s in self.v_reads(t, d, 0):
                    e(s)
        e(f"s_mov_b32 s{S_T0}, {f32bits(-1e9*1.4426950408889634):#x}")
        for g in range(4):
            for k in range(2):
                src = 16 + 2 * g + k
                d0 = V_BIAS + 4 * g + 2 * k
                e(f"v_lshlrev_b32 v{d0}, 16, v{src}")
                e(f"v_and_b32 v{d0+1}, 0xffff0000, v{src}")
        for i in range(16):
            e(f"v_sub_f32 v{V_BIAS+i}, 1.0, v{V_BIAS+i}")
        for i in range(16):
            e(f"v_fma_f32 v{V_BIAS+i}, v{V_BIAS+i}, s{S_T0}, v{V_CA+i}")
        for t in range(2):
            for d in range(4):
                for s in self.v_reads(t, d, 0, dst=A_VT, addr=56 + d, off=0):
                    e(s)
        for ks in range(8):
            e(self.k_read(ks, 1))
        e("s_waitcnt lgkmcnt(0)")
        mf = self.qk_mfmas("A", kf=A_KT, cin=V_BIAS) + self.pv_mfmas("A")
        gaps = {}
        for k, st in enumerate(self.sm_stream("B")):
            gaps.setdefault(0 + k // 2, []).extend(st + (["s_nop 0"] if k % 2 == 0 else []))
        for k, st in enumerate(self.sm_stream("A")):
            gaps.setdefault(12 + k // 2, []).extend(st + (["s_nop 0"] if k % 2 == 0 else []))
        self.emit_sched(mf, gaps)
        e("s_nop 1")
        self.stamp()
        vm0 = 4 + (4 if self.code_pf else 0) + 4 + 8
        tail = self.iteration(0, None, vm=vm0, pva_vf=A_VT)
        e(f"s_mov_b32 s{S_LOOP}, 7")
        self.label("L_loop")
        first_tail = tail
        t = first_tail
        for m in (1, 2, 3, 4):
            le = None
            if m == 4:
                le = [f"s_sub_u32 s{S_LOOP}, s{S_LOOP}, 1", f"s_cmp_lg_u32 s{S_LOOP}, 0", "s_cbranch_scc1 L_loop"]
            t = self.iteration(m, t, loop_end=le)
        self.stamp()
        t = self.iteration(29, t, dma=False, vm=8)
        t = self.iteration(30, t, dma=False, vm=0, kread=False)
        self.stamp()
        self.c("---- final PV")
        mf = self.pv_mfmas("A") + self.pv_mfmas("B")
        gaps = {}
        for k, st in enumerate(t):
            gaps.setdefault(k // 2, []).extend(st + (["s_nop 0"] if k % 2 == 0 else []))
        self.emit_sched(mf, gaps, pre={0: ["s_waitcnt lgkmcnt(0)"], 8: ["s_nop 1"]})
        e(f"v_lshlrev_b32 v0, 4, v{ln}")
        e(f"s_lshl_b32 s{S_T0}, s{S_W}, 14")
        e(f"s_xor_b32 s{S_T1}, s{S_T0}, 16384")
        e(f"v_add_u32 v1, s{S_T0}, v0")
        e(f"v_add_u32 v2, s{S_T1}, v0")
        e(f"v_lshlrev_b32 v3, 3, v{ln}")
        e(f"s_lshl_b32 s{S_T0}, s{S_W}, 9")
        e(f"s_add_u32 s{S_T0}, s{S_T0}, {LDS_KT}")
        e(f"s_xor_b32 s{S_T1}, s{S_T0}, 512")
        e(f"v_add_u32 v4, s{S_T0}, v3")
        e(f"v_add_u32 v5, s{S_T1}, v3")
        e(f"v_mov_b32 v6, v{V_MB}")
        e(f"v_mov_b32 v7, v{V_LB}")
        e("s_nop 7")
        e("s_nop 3")
        e(f"ds_write_b64 v4, v[6:7]")
        for r4 in range(16):
            e(f"ds_write_b128 v1, a[{A_OB+4*r4}:{A_OB+4*r4+3}] offset:{r4*1024}")
        e("s_waitcnt lgkmcnt(0)")
        e("s_barrier")
        e(f"ds_read_b64 v[6:7], v5")
        for r4 in range(16):
            e(f"ds_read_b128 v[{128+4*r4}:{128+4*r4+3}], v2 offset:{r4*1024}")
        e("s_waitcnt lgkmcnt(15)")
        e(f"v_max_f32 v8, v{V_MA}, v6")
        e(f"v_sub_f32 v9, v{V_MA}, v8")
        e(f"v_sub_f32 v10, v6, v8")
        e(f"v_exp_f32 v9, v9")
        e(f"v_exp_f32 v10, v10")
        e("s_nop 0")
        e(f"v_mul_f32 v11, v{V_LA}, v9")
        e(f"v_fma_f32 v11, v7, v10, v11")
        e(f"v_mov_b32 v12, v11")
        e("s_nop 1")
        e(f"v_permlane32_swap_b32 v11, v12")
        e("s_nop 1")
        e(f"v_add_f32 v11, v11, v12")
        e(f"v_rcp_f32 v11, v11")
        e("s_nop 0")
        e(f"v_mul_f32 v14, v9, v11")
        e(f"v_mul_f32 v16, v10, v11")
        e(f"v_mov_b32 v15, v14")
        e(f"v_mov_b32 v17, v16")
        e(f"v_and_b32 v18, 31, v{ln}")
        e(f"v_lshrrev_b32 v19, 5, v{ln}")
        e(f"v_lshlrev_b32 v18, 8, v18")
        e(f"v_lshl_add_u32 v18, v19, 4, v18")
        e(f"s_lshl_b32 s{S_T0}, s{S_W}, 13")
        e(f"v_add_u32 v18, s{S_T0}, v18")
        for d in range(4):
            for a in range(2):
                base = 16 * d + 8 * a
                r4 = base // 4
                e(f"s_waitcnt lgkmcnt({15-(r4+1)})")
                pk = 20 + 4 * ((2 * d + a) % 4)
                for k in range(0, 8, 2):
                    o = 128 + base + k
                    e(f"v_pk_mul_f32 v[{o}:{o+1}], v[{o}:{o+1}], v[16:17]")
                for k in range(0, 8, 2):
                    o = 128 + base + k
                    oa = V_OA + base + k
                    e(f"v_pk_fma_f32 v[{o}:{o+1}], v[{oa}:{oa+1}], v[14:15], v[{o}:{o+1}]")
                for k in range(4):
                    o = 128 + base + 2 * k
                    e(f"v_cvt_pk_bf16_f32 v{pk+k}, v{o}, v{o+1}")
                e("s_nop 1")
                e(f"v_permlane32_swap_b32 v{pk}, v{pk+2}")
                e(f"v_permlane32_swap_b32 v{pk+1}, v{pk+3}")
                e("s_nop 1")
                e(f"buffer_store_dwordx4 v[{pk}:{pk+3}], v18, s[{S_O}:{S_O+3}], 0 offen offset:{d*64+a*32}")
        if self.stamps:
            e("s_waitcnt vmcnt(0)")
            self.stamp()
            e("s_memrealtime s[100:101]")
            e("s_waitcnt lgkmcnt(0)")
            e("s_mov_b32 s8, s18"); e("s_mov_b32 s9, s19"); e("s_mov_b32 s10, 0x1000000"); e("s_mov_b32 s11, 0x00020000")
            e("s_lshl_b32 s3, s2, 2")
            e(f"s_add_u32 s3, s3, s{S_W}")
            e("s_lshl_b32 s3, s3, 7")
            e("v_mov_b32 v4, s3")
            e(f"v_cmp_eq_u32 vcc, 0, v{ln}")
            e("s_and_saveexec_b64 s[12:13], vcc")
            for k in range(self.nstamp):
                e(f"s_sub_u32 s3, s{72+2*k}, s72")
                e("v_mov_b32 v6, s3")
                e(f"buffer_store_dword v6, v4, s[8:11], 0 offen offset:{4*k}")
            e("v_mov_b32 v6, s100")
            e(f"buffer_store_dword v6, v4, s[8:11], 0 offen offset:{4*16}")
        self.label("L_done")
        e("s_endpgm")
        for u, X in self.stubs:
            self.label(f"L_stub{u}")
            e(f"s_call_b64 s[{S_RET}:{S_RET+1}], L_slow{X}")
            e(f"s_branch L_back{u}")
        self.slow_path("A")
        self.slow_path("B")
        L.append('.section .rodata,"a"')
        L.append(".p2align 6")
        L.append(f".amdhsa_kernel {KNAME}")
        L.append("  .amdhsa_next_free_vgpr 512")
        L.append("  .amdhsa_next_free_sgpr 102")
        L.append("  .amdhsa_accum_offset 256")
        L.append("  .amdhsa_group_segment_fixed_size 0")
        L.append("  .amdhsa_kernarg_size 72")
        L.append("  .amdhsa_user_sgpr_count 2")
        L.append("  .amdhsa_user_sgpr_kernarg_segment_ptr 1")
        L.append("  .amdhsa_system_sgpr_workgroup_id_x 1")
        L.append(".end_amdhsa_kernel")
        return "\n".join(L) + "\n"


if __name__ == "__main__":
    ap = argparse.ArgumentParser()
    ap.add_argument("-o", default="k1.s")
    ap.add_argument("--no-nt", action="store_true")
    ap.add_argument("--stamps", action="store_true")
    ap.add_argument("--no-pf", action="store_true")
    a = ap.parse_args()
    g = Gen(nt=not a.no_nt, stamps=a.stamps, code_pf=not a.no_pf)
    open(a.o, "w").write(g.build())
```

```python
import sys, struct, argparse

KNAME = "standalone__tree_speculative_verify_tree_attention_over_candidate_token_tree__sampling_kernel"
HEADER = open("standalone__tree_speculative_verify_tree_attention_over_candidate_token_tree__sampling.s.ref").read().split("; Override launch")[0]


def f32bits(x):
    return struct.unpack("<I", struct.pack("<f", x))[0]


V_OA = 64
V_SA, V_SB = 128, 144
V_CA, V_CB = 160, 176
V_PA, V_PB = 192, 200
V_EA, V_EB = 208, 212
V_TA, V_TB = 216, 217
V_LA, V_LB = 218, 219
V_MA, V_MB = 220, 221
V_LANE = 222
V_KA = 224
V_VA = 232
V_DK = 236
V_DV = 240
V_SL = 242
V_ST = 32
V_IT = 48
A_OB = 0
A_QA, A_QB = 64, 96
A_KF = 128
A_VF = 160
A_VT = 192
A_KT = 224
S_K, S_V, S_Q, S_KT, S_VT, S_M, S_O = 20, 24, 28, 32, 36, 40, 44
S_W, S_I, S_J = 48, 49, 50
S_KOFF, S_VOFF = 51, 52
S_WB = 53
S_LOOP = 54
S_THR = 55
S_RET = 60
S_T0, S_T1, S_T2, S_T3 = 62, 63, 64, 65
S_BH, S_QH = 66, 67
S_T4 = 59
S_C = 68
S_PC = 70

LDS_V = 65536
LDS_KT = 131072
LDS_VT = 139264
LDS_ML = 147456
THR = 16384.0
SCALE = (128 ** -0.5) * 1.4426950408889634


def spread(ops, g0, g1):
    n = len(ops)
    k = g1 - g0 + 1
    return [(g0 + (i * k) // n, op) for i, op in enumerate(ops)]


class Gen:
    def __init__(self, nt=True, code_pf=True, stamps=False, exp="", cfg=None):
        self.L = []
        self.nt = " nt" if nt else ""
        self.code_pf = code_pf
        self.uid = 0
        self.stubs = []
        self.stamps = stamps
        self.nstamp = 0
        self.exp = exp
        self.cfg = dict(
            kread=[16 + i for i in range(8)],
            vread=[24, 25, 29, 30, 31, 32, 33, 34, 35, 36, 37, 38, 39, 40, 41, 41],
            dmak=[1, 3, 5, 7], dmav=[8, 9, 13, 14],
            sma=10, smb=26, bar=15,
        )
        if cfg:
            self.cfg.update(cfg)

    def e(self, s):
        self.L.append("  " + s)

    def label(self, s):
        self.L.append(s + ":")

    def c(self, s):
        self.L.append("  ; " + s)

    def stamp(self):
        if self.stamps:
            k = self.nstamp
            self.nstamp += 1
            assert k < 13
            self.e(f"s_memtime s[{72+2*k}:{73+2*k}]")

    def blk(self, X):
        if X == "A":
            return dict(S=V_SA, C=V_CA, P=V_PA, E=V_EA, T=V_TA, L=V_LA, M=V_MA, Q=A_QA, IT=V_IT)
        return dict(S=V_SB, C=V_CB, P=V_PB, E=V_EB, T=V_TB, L=V_LB, M=V_MB, Q=A_QB, IT=V_IT + 8)

    def qk_mfmas(self, X, kf=A_KF, cin=None, dst=None):
        r = self.blk(X)
        S = r["S"] if dst is None else dst
        Q = r["Q"]
        C = f"v[{r['C']}:{r['C']+15}]" if cin is None else cin
        out = []
        for ks in range(8):
            c = C if ks == 0 else f"v[{S}:{S+15}]"
            out.append(f"v_mfma_f32_32x32x16_bf16 v[{S}:{S+15}], a[{kf+4*ks}:{kf+4*ks+3}], a[{Q+4*ks}:{Q+4*ks+3}], {c}")
        return out

    def pv_mfmas(self, X, vf=A_VF, dmajor=False):
        r = self.blk(X)
        P = r["P"]
        out = []
        order = [(t, d) for t in range(2) for d in range(4)]
        if dmajor:
            order = [(t, d) for d in range(4) for t in range(2)]
        for t, d in order:
            f = vf + 4 * (4 * t + d)
            if X == "A":
                o = f"v[{V_OA+16*d}:{V_OA+16*d+15}]"
            else:
                o = f"a[{A_OB+16*d}:{A_OB+16*d+15}]"
            out.append(f"v_mfma_f32_32x32x16_bf16 {o}, a[{f}:{f+3}], v[{P+4*t}:{P+4*t+3}], {o}")
        return out

    def sm_stream(self, X, src=None):
        r = self.blk(X)
        S, P, E, T, Lr = r["S"], r["P"], r["E"], r["T"], r["L"]
        if src is not None:
            S = src
        steps = []
        for e in range(16):
            st = [f"v_exp_f32 v{E+e%4}, v{S+e}"]
            if e == 2:
                st.append(f"v_add_f32 v{T}, v{E+0}, v{E+1}")
            elif e > 2:
                st.append(f"v_add_f32 v{T}, v{T}, v{E+(e-1)%4}")
            if e >= 2 and e % 2 == 0:
                st.append(f"v_cvt_pk_bf16_f32 v{P+(e-2)//2}, v{E+(e-2)%4}, v{E+(e-1)%4}")
            steps.append(st)
        steps.append([f"v_add_f32 v{T}, v{T}, v{E+15%4}", f"v_cvt_pk_bf16_f32 v{P+7}, v{E+14%4}, v{E+15%4}"])
        steps.append([f"v_cmp_nge_f32 vcc, s{S_THR}, v{T}"])
        self.uid += 1
        u = self.uid
        self.stubs.append((u, X, src))
        steps.append([f"s_cbranch_vccnz L_stub{u}", f"L_back{u}:", f"v_add_f32 v{Lr}, v{Lr}, v{T}"])
        return steps

    def ism_part1(self, X):
        r = self.blk(X)
        S, M, t = r["S"], r["M"], r["IT"]
        return [
            f"v_max3_f32 v{t}, v{S}, v{S+1}, v{S+2}",
            f"v_max3_f32 v{t+1}, v{S+3}, v{S+4}, v{S+5}",
            f"v_max3_f32 v{t+2}, v{S+6}, v{S+7}, v{S+8}",
            f"v_max3_f32 v{t+3}, v{S+9}, v{S+10}, v{S+11}",
            f"v_max3_f32 v{t+4}, v{S+12}, v{S+13}, v{S+14}",
            f"v_max3_f32 v{t}, v{t}, v{t+1}, v{S+15}",
            f"v_max3_f32 v{t+2}, v{t+2}, v{t+3}, v{t+4}",
            f"v_max_f32 v{t}, v{t}, v{t+2}",
            f"v_mov_b32 v{t+1}, v{t}",
            "s_nop 1",
            f"v_permlane32_swap_b32 v{t}, v{t+1}",
            "s_nop 1",
            f"v_max_f32 v{M}, v{t}, v{t+1}",
            f"v_sub_f32 v{t+2}, 0, v{M}",
        ]

    def ism_part2(self, X):
        r = self.blk(X)
        S, C, P, E, Lr, M, t = r["S"], r["C"], r["P"], r["E"], r["L"], r["M"], r["IT"]
        ops = []
        for i in range(16):
            ops.append(f"v_sub_f32 v{S+i}, v{S+i}, v{M}")
        ex = []
        for e in range(16):
            ex.append(f"v_exp_f32 v{E+e%4}, v{S+e}")
            ex.append(f"v_mov_b32 v{C+e}, v{t+2}")
            if e == 2:
                ex.append(f"v_add_f32 v{Lr}, v{E+0}, v{E+1}")
            elif e > 2:
                ex.append(f"v_add_f32 v{Lr}, v{Lr}, v{E+(e-1)%4}")
            if e >= 2 and e % 2 == 0:
                ex.append(f"v_cvt_pk_bf16_f32 v{P+(e-2)//2}, v{E+(e-2)%4}, v{E+(e-1)%4}")
        ex.append(f"v_add_f32 v{Lr}, v{Lr}, v{E+3}")
        ex.append(f"v_cvt_pk_bf16_f32 v{P+7}, v{E+2}, v{E+3}")
        return ops + ex

    def emit_line(self, s):
        if s.endswith(":"):
            self.label(s[:-1])
        else:
            self.e(s)

    def k_read(self, ks, slot, dst=A_KF, addr=None, off=None):
        a = V_KA + ks if addr is None else addr
        o = slot * 16384 if off is None else off
        return f"ds_read_b128 a[{dst+4*ks}:{dst+4*ks+3}], v{a} offset:{o}"

    def v_reads(self, t, d, slot, dst=A_VF, addr=None, off=None):
        a = V_VA + d if addr is None else addr
        o = slot * 16384 if off is None else off
        f = dst + 4 * (4 * t + d)
        return [f"ds_read_b64_tr_b16 a[{f}:{f+1}], v{a} offset:{o+t*4096}",
                f"ds_read_b64_tr_b16 a[{f+2}:{f+3}], v{a} offset:{o+t*4096+2048}"]

    def dma_k(self, q, soff=S_KOFF, srd=S_K, v=None):
        vv = V_DK + q if v is None else v
        return f"buffer_load_dwordx4 v{vv}, s[{srd}:{srd+3}], s{soff} offen offset:{q*1024}{self.nt} lds"

    def dma_v(self, q, soff=S_VOFF, srd=S_V, v=None):
        vv = V_DV if v is None else v
        return f"buffer_load_dwordx4 v{vv}, s[{srd}:{srd+3}], s{soff} offen offset:{q*1024}{self.nt} lds"

    def dma_k_stage(self, slot):
        return ([f"s_add_u32 m0, s{S_WB}, {slot*16384}", "s_nop 0"] + [self.dma_k(q) for q in range(4)]
                + [f"s_add_u32 s{S_KOFF}, s{S_KOFF}, 16384"])

    def dma_v_stage(self, slot):
        return ([f"s_add_u32 m0, s{S_WB}, {LDS_V+slot*16384}", "s_nop 0"] + [self.dma_v(q) for q in range(4)]
                + [f"s_add_u32 s{S_VOFF}, s{S_VOFF}, 16384"])

    def emit_all(self, lines):
        for s in lines:
            self.emit_line(s)

    def emit_sched(self, mfmas, gaps, pre=None):
        pre = pre or {}
        n = len(mfmas)
        for k in sorted(g for g in gaps if g < 0):
            for s in gaps[k]:
                self.emit_line(s)
        for k in range(n):
            for s in pre.get(k, []):
                self.emit_line(s)
            self.e(mfmas[k])
            for s in gaps.get(k, []):
                self.emit_line(s)
        for k in sorted(g for g in gaps if g >= n):
            for s in gaps[k]:
                self.emit_line(s)

    def iteration(self, m, carry, dma=True, vm=16, pva_vf=A_VF, kread=True, loop_end=None, bar=None,
                  first=False):
        cfg = self.cfg
        mm = m % 4
        self.c(f"---- iteration {m} (mod 4 = {mm})")
        items = []

        def put(g, s):
            if 'novalu' in self.exp and s.startswith('v_'):
                return
            if 'nods' in self.exp and s.startswith('ds_'):
                return
            items.append((g, s))

        mf = self.qk_mfmas("A") + self.pv_mfmas("A", pva_vf) + self.qk_mfmas("B") + self.pv_mfmas("B")
        for g, s in carry:
            put(g, s)
        for k, st in enumerate(self.sm_stream("A")):
            for s in st:
                put(cfg["sma"] + k, s)
        for k, st in enumerate(self.sm_stream("B")):
            for s in st:
                put(cfg["smb"] + k, s)
        if dma and 'nodma' not in self.exp:
            gk, gv = cfg["dmak"], cfg["dmav"]
            ah = 1 if cfg.get("ahead") else 0
            if ah:
                assert gk[0] - 1 >= cfg["bar"]
            mm = (mm + ah) % 4
            put(gk[0] - 1, f"s_add_u32 m0, s{S_WB}, {(mm)*16384}")
            for q, g in enumerate(gk):
                put(g, self.dma_k(q))
            put(gk[3], f"s_add_u32 m0, s{S_WB}, {LDS_V+((mm+3)%4)*16384}")
            put(gk[3], f"s_add_u32 s{S_KOFF}, s{S_KOFF}, 16384")
            assert gv[0] > gk[3]
            for q, g in enumerate(gv):
                put(g, self.dma_v(q))
            put(gv[3], f"s_add_u32 s{S_VOFF}, s{S_VOFF}, 16384")
            mm = m % 4
        bg = cfg["bar"] if bar is None else bar
        put(bg, f"s_waitcnt vmcnt({vm})")
        if 'nobar' not in self.exp:
            put(bg, "s_barrier")
        if kread:
            for ks in range(8):
                assert cfg["kread"][ks] >= 16 + ks and cfg["kread"][ks] > bg
                put(cfg["kread"][ks], self.k_read(ks, (mm + 2) % 4))
        vr = []
        for t in range(2):
            for d in range(4):
                vr += self.v_reads(t, d, (mm + 1) % 4)
        for k, s in enumerate(vr):
            g = max(cfg["vread"][k], bg + 1)
            assert g >= 24 + k // 2
            put(g, s)
        if loop_end:
            for s in loop_end:
                put(31, s)
        gaps = {}
        nxt = []
        items.sort(key=lambda x: (x[0], 0 if (x[1].startswith("s_waitcnt vmcnt") or x[1] == "s_barrier") and cfg.get("ahead") else 1))
        for g, s in items:
            if g >= 32:
                nxt.append((g - 32, s))
            else:
                gaps.setdefault(g, []).append(s)
        seq = sorted([(cfg["kread"][ks], 0, ks, "K") for ks in range(8)] +
                     [(cfg["vread"][k], 1, k, "V") for k in range(16)])
        pre = {}
        def wait_for(pos, pred):
            issued = [x for x in seq if x[0] < 32 + pos]
            last = max(i for i, x in enumerate(issued) if pred(x))
            n = len(issued) - 1 - last
            return min(n, 15)
        if not first:
            pre[0] = [f"s_waitcnt lgkmcnt({wait_for(0, lambda x: x[3]=='K')})"]
            pre[8] = [f"s_waitcnt lgkmcnt({wait_for(8, lambda x: x[3]=='V' and x[2] < 8)})"]
            pre[12] = [f"s_waitcnt lgkmcnt({wait_for(12, lambda x: x[3]=='V')})"]
        self.emit_sched(mf, gaps, pre)
        return nxt

    def slow_path(self, X):
        r = self.blk(X)
        S, C, P, T, Lr, M = r["S"], r["C"], r["P"], r["T"], r["L"], r["M"]
        t = V_SL
        self.label(f"L_slow{X}")
        e = self.e
        e(f"v_max3_f32 v{t}, v{S}, v{S+1}, v{S+2}")
        e(f"v_max3_f32 v{t+1}, v{S+3}, v{S+4}, v{S+5}")
        e(f"v_max3_f32 v{t+2}, v{S+6}, v{S+7}, v{S+8}")
        e(f"v_max3_f32 v{t+3}, v{S+9}, v{S+10}, v{S+11}")
        e(f"v_max3_f32 v{t+4}, v{S+12}, v{S+13}, v{S+14}")
        e(f"v_max3_f32 v{t}, v{t}, v{t+1}, v{S+15}")
        e(f"v_max3_f32 v{t+2}, v{t+2}, v{t+3}, v{t+4}")
        e(f"v_max_f32 v{t}, v{t}, v{t+2}")
        e(f"v_mov_b32 v{t+1}, v{t}")
        e("s_nop 1")
        e(f"v_permlane32_swap_b32 v{t}, v{t+1}")
        e("s_nop 1")
        e(f"v_max3_f32 v{t}, v{t}, v{t+1}, 0")
        e(f"v_add_f32 v{M}, v{M}, v{t}")
        e(f"v_exp_f32 v{t+1}, -v{t}")
        e(f"v_sub_f32 v{t+2}, 0, v{M}")
        for i in range(16):
            e(f"v_mov_b32 v{C+i}, v{t+2}")
        e(f"v_mul_f32 v{Lr}, v{Lr}, v{t+1}")
        if X == "A":
            for i in range(64):
                e(f"v_mul_f32 v{V_OA+i}, v{V_OA+i}, v{t+1}")
        else:
            for i in range(0, 64, 4):
                for k in range(4):
                    e(f"v_accvgpr_read_b32 v{t+4+k}, a{A_OB+i+k}")
                for k in range(4):
                    e(f"v_mul_f32 v{t+4+k}, v{t+4+k}, v{t+1}")
                for k in range(4):
                    e(f"v_accvgpr_write_b32 a{A_OB+i+k}, v{t+4+k}")
        for i in range(0, 16, 4):
            for k in range(4):
                e(f"v_sub_f32 v{t+4+k}, v{S+i+k}, v{t}")
            for k in range(4):
                e(f"v_exp_f32 v{t+4+k}, v{t+4+k}")
            e("s_nop 0")
            if i == 0:
                e(f"v_add_f32 v{T}, v{t+4}, v{t+5}")
            else:
                e(f"v_add_f32 v{T}, v{T}, v{t+4}")
                e(f"v_add_f32 v{T}, v{T}, v{t+5}")
            e(f"v_add_f32 v{T}, v{T}, v{t+6}")
            e(f"v_add_f32 v{T}, v{T}, v{t+7}")
            e(f"v_cvt_pk_bf16_f32 v{P+i//2}, v{t+4}, v{t+5}")
            e(f"v_cvt_pk_bf16_f32 v{P+i//2+1}, v{t+6}, v{t+7}")
        e("s_nop 1")
        e(f"s_setpc_b64 s[{S_RET}:{S_RET+1}]")

    def srd(self, d, lo, hi, off, size):
        e = self.e
        e(f"s_add_u32 s{d}, s{lo}, s{off}")
        e(f"s_addc_u32 s{d+1}, s{hi}, 0")
        e(f"s_mov_b32 s{d+2}, {size}")
        e(f"s_mov_b32 s{d+3}, 0x00020000")

    def build(self):
        e = self.e
        L = self.L
        L.append(HEADER.rstrip())
        L.append("; @launch grid=(256,1,1) block=(256,1,1) lds=163840")
        L.append('.amdgcn_target "amdgcn-amd-amdhsa--gfx950"')
        L.append(".text")
        L.append(f".globl {KNAME}")
        L.append(".p2align 8")
        L.append(f".type {KNAME},@function")
        self.label(KNAME)
        self.stamp()
        if self.stamps:
            e("s_memrealtime s[98:99]")
        e("s_cmp_ge_u32 s2, 256")
        e("s_cbranch_scc1 L_done")
        e("s_load_dwordx8 s[4:11], s[0:1], 0")
        e("s_load_dwordx4 s[12:15], s[0:1], 32")
        e("s_load_dwordx2 s[16:17], s[0:1], 48")
        if self.stamps:
            e("s_load_dwordx2 s[18:19], s[0:1], 64")
        e(f"s_getpc_b64 s[{S_PC}:{S_PC+1}]")
        e(f"v_lshrrev_b32 v1, 6, v0")
        e(f"v_and_b32 v{V_LANE}, 63, v0")
        ln = V_LANE
        if self.code_pf:
            e(f"v_lshlrev_b32 v13, 4, v0")
            e("s_cmp_ge_u32 s2, 32")
            e("s_cbranch_scc1 L_nopf")
            for k in range(4):
                e(f"global_load_dwordx4 v[24:27], v13, s[{S_PC}:{S_PC+1}]")
                e(f"v_add_u32 v13, 0x1000, v13")
            self.label("L_nopf")
        e("s_and_b32 s3, s2, 7")
        e(f"v_readfirstlane_b32 s{S_W}, v1")
        e(f"s_lshr_b32 s{S_BH}, s2, 4")
        e(f"s_lshl_b32 s{S_BH}, s{S_BH}, 3")
        e(f"s_add_u32 s{S_BH}, s{S_BH}, s3")
        if 'samebh' in self.exp:
            e(f"s_and_b32 s{S_BH}, s{S_BH}, 7")
        e(f"s_lshr_b32 s{S_QH}, s2, 3")
        e(f"s_and_b32 s{S_QH}, s{S_QH}, 1")
        e(f"s_lshr_b32 s{S_I}, s{S_W}, 1")
        e(f"s_and_b32 s{S_J}, s{S_W}, 1")
        e(f"s_lshl_b32 s{S_WB}, s{S_W}, 12")
        e(f"v_lshrrev_b32 v1, 4, v{ln}")
        e(f"v_and_b32 v2, 15, v{ln}")
        e(f"v_lshlrev_b32 v3, 8, v1")
        e(f"v_add_u32 v3, s{S_WB}, v3")
        for q in range(4):
            e(f"v_add_u32 v4, {4*q}, v1")
            e(f"v_xor_b32 v4, v4, v2")
            e(f"v_lshl_add_u32 v{V_DK+q}, v4, 4, v3")
        e(f"v_lshlrev_b32 v4, 2, v1")
        e(f"v_xor_b32 v4, v4, v2")
        e(f"v_lshl_add_u32 v{V_DV}, v4, 4, v3")
        e(f"v_and_b32 v5, 31, v{ln}")
        e(f"v_lshrrev_b32 v6, 5, v{ln}")
        e(f"v_lshlrev_b32 v7, 6, v5")
        e(f"v_lshl_add_u32 v7, v6, 3, v7")
        e(f"v_lshlrev_b32 v14, 4, v{ln}")
        e(f"s_lshl_b32 s{S_T0}, s{S_BH}, 16")
        e(f"s_lshl_b32 s{S_T1}, s{S_QH}, 15")
        e(f"s_add_u32 s{S_T0}, s{S_T0}, s{S_T1}")
        e(f"s_lshl_b32 s{S_T1}, s{S_BH}, 19")
        e(f"s_lshr_b32 s{S_T2}, s{S_BH}, 2")
        e(f"s_lshl_b32 s{S_T2}, s{S_T2}, 11")
        e(f"s_lshl_b32 s{S_T3}, s{S_W}, 13")
        e(f"s_mov_b32 s{S_KOFF}, 0")
        e(f"s_mov_b32 s{S_VOFF}, 0")
        e("s_waitcnt lgkmcnt(0)")
        self.stamp()
        self.srd(S_Q, 4, 5, S_T0, 32768)
        for k in range(4):
            e(f"buffer_load_dwordx4 v[{128+4*k}:{131+4*k}], v14, s[{S_Q}:{S_Q+3}], s{S_T3} offen offset:{k*1024}{self.nt}")
        e(f"s_add_u32 s{S_T3}, s{S_T3}, 4096")
        self.srd(S_K, 6, 7, S_T1, 524288)
        for k in range(4):
            e(f"buffer_load_dwordx4 v[{144+4*k}:{147+4*k}], v14, s[{S_Q}:{S_Q+3}], s{S_T3} offen offset:{k*1024}{self.nt}")
        self.emit_all(self.dma_k_stage(0))
        self.srd(S_M, 14, 15, S_T2, 2048)
        for g in range(4):
            e(f"buffer_load_dwordx2 v[{16+2*g}:{17+2*g}], v7, s[{S_M}:{S_M+3}], 0 offen offset:{16*g}")
        self.srd(S_V, 8, 9, S_T1, 524288)
        late = 'late' in self.exp
        deferred = []
        def issue(lines):
            if late:
                deferred.append(lines)
            else:
                self.emit_all(lines)
        issue(self.dma_v_stage(0))
        e(f"s_lshl_b32 s{S_T1}, s{S_BH}, 13")
        self.srd(S_KT, 10, 11, S_T1, 8192)
        self.srd(S_VT, 12, 13, S_T1, 8192)
        self.srd(S_O, 16, 17, S_T0, 32768)
        e(f"s_lshl_b32 s{S_T1}, s{S_W}, 11")
        e(f"s_lshl_b32 s{S_T2}, s{S_J}, 3")
        e(f"v_lshlrev_b32 v8, 8, v1")
        e(f"v_add_u32 v8, s{S_T1}, v8")
        for q in range(2):
            e(f"v_add_u32 v9, s{S_T2}, v1")
            e(f"v_add_u32 v9, {4*q}, v9")
            e(f"v_xor_b32 v9, v9, v2")
            e(f"v_lshl_add_u32 v{10+q}, v9, 4, v8")
        e(f"v_subrev_u32 v12, s{S_T1}, v{V_DV}")
        e(f"s_mov_b32 s{S_T3}, 0")
        e(f"s_mov_b32 s{S_T4}, s{S_T1}")
        e(f"v_mov_b32 v15, v10")
        e(f"v_mov_b32 v13, v11")
        issue([f"s_add_u32 m0, s{S_T4}, {LDS_KT}", "s_nop 0"] + [self.dma_k(q, soff=S_T3, srd=S_KT, v=(15, 13)[q]) for q in range(2)])
        e(f"s_lshl_b32 s{S_T2}, s{S_J}, 13")
        e(f"v_lshlrev_b32 v8, 8, v5")
        e(f"v_add_u32 v8, s{S_T2}, v8")
        e(f"v_xor_b32 v9, v6, v2")
        for ks in range(8):
            e(f"v_xor_b32 v10, {2*ks}, v9")
            e(f"v_lshl_add_u32 v{V_KA+ks}, v10, 4, v8")
        e(f"v_lshrrev_b32 v9, 2, v2")
        e(f"v_lshl_add_u32 v10, v6, 2, v9")
        e(f"v_lshlrev_b32 v10, 8, v10")
        e(f"s_add_u32 s{S_T2}, s{S_T2}, {LDS_V}")
        e(f"v_add_u32 v10, s{S_T2}, v10")
        e(f"v_and_b32 v11, 1, v1")
        e(f"v_lshl_add_u32 v10, v11, 5, v10")
        e(f"v_and_b32 v11, 3, v{ln}")
        e(f"v_lshl_add_u32 v10, v11, 3, v10")
        for d in range(4):
            e(f"v_xor_b32 v11, {d}, v9")
            e(f"v_lshl_add_u32 v{V_VA+d}, v11, 6, v10")
        issue(self.dma_k_stage(1))
        for i in range(64):
            e(f"v_mov_b32 v{V_OA+i}, 0")
        issue([f"s_add_u32 m0, s{S_T4}, {LDS_VT}", "s_nop 0"] + [self.dma_v(q, soff=S_T3, srd=S_VT, v=12) for q in range(2)])
        for i in range(64):
            e(f"v_accvgpr_write_b32 a{A_OB+i}, 0")
        e(f"s_mov_b32 s{S_THR}, {f32bits(THR):#x}")
        e(f"s_mov_b32 s{S_C}, {f32bits(SCALE):#x}")
        e(f"s_mov_b32 s{S_C+1}, {f32bits(SCALE):#x}")
        e(f"s_lshl_b32 s{S_T1}, s{S_I}, 16")
        e(f"s_add_u32 s{S_T1}, s{S_T1}, 49152")
        e(f"s_lshl_b32 s{S_T2}, s{S_J}, 13")
        e(f"s_add_u32 s{S_T2}, s{S_T2}, s{S_T1}")
        e(f"s_sub_u32 s{S_T2}, s{S_T2}, s{S_WB}")
        for q in range(4):
            e(f"v_add_u32 v{8+q}, s{S_T2}, v{V_DK+q}")
        e(f"s_lshl_b32 s{S_T2}, s{S_J}, 14")
        e(f"s_sub_u32 s{S_T2}, s{S_T1}, s{S_T2}")
        e(f"s_add_u32 s{S_T2}, s{S_T2}, 8192")
        for ks in range(8):
            e(f"v_add_u32 v{48+ks}, s{S_T1}, v{V_KA+ks}")
            e(f"v_add_u32 v{56+ks}, s{S_T2}, v{V_KA+ks}")
        e(f"s_lshl_b32 s{S_T2}, s{S_J}, 13")
        e(f"s_sub_u32 s{S_T1}, {LDS_KT}, s{S_T2}")
        e(f"s_sub_u32 s{S_T2}, {LDS_VT-LDS_V}, s{S_T2}")
        for ks in range(8):
            e(f"v_add_u32 v{ks}, s{S_T1}, v{V_KA+ks}")
        for d in range(4):
            e(f"v_add_u32 v{28+d}, s{S_T2}, v{V_VA+d}")
        self.stamp()
        extra = self.dma_v_stage(1)
        nv = 8 if late else 20
        for k in range(8):
            e(f"s_waitcnt vmcnt({nv + 7 - k})")
            if k == 0:
                self.stamp()
            if late and k % 2 == 0 and deferred:
                lines = deferred.pop(0)
                self.emit_all(lines)
                nv += sum(1 for x in lines if x.startswith("buffer_load"))
            for x in range(4):
                src = 128 + 4 * k + x
                t = 192 + 2 * x
                e(f"v_lshlrev_b32 v{t}, 16, v{src}")
                e(f"v_and_b32 v{t+1}, 0xffff0000, v{src}")
            for x in range(4):
                t = 192 + 2 * x
                e(f"v_pk_mul_f32 v[{t}:{t+1}], v[{t}:{t+1}], s[{S_C}:{S_C+1}]")
            o = 200 + 4 * (k % 2)
            for x in range(4):
                t = 192 + 2 * x
                e(f"v_cvt_pk_bf16_f32 v{o+x}, v{t}, v{t+1}")
            e(f"ds_write_b128 v{8+k%4}, v[{o}:{o+3}] offset:{(k>>2)*4096+(k&3)*1024}")
        self.emit_all(extra)
        e(f"s_waitcnt vmcnt(16) lgkmcnt(0)")
        e("s_barrier")
        self.stamp()
        for ks in range(8):
            e(f"ds_read_b128 a[{A_QA+4*ks}:{A_QA+4*ks+3}], v{48+ks}")
            e(self.k_read(ks, 0))
        for ks in range(8):
            e(f"ds_read_b128 a[{A_QB+4*ks}:{A_QB+4*ks+3}], v{56+ks}")
        e(f"s_mov_b32 s{S_T0}, {f32bits(-1e9*1.4426950408889634):#x}")
        bias1 = []
        for g in range(4):
            for k in range(2):
                src = 16 + 2 * g + k
                d0 = V_ST + 4 * g + 2 * k
                bias1.append(f"v_lshlrev_b32 v{d0}, 16, v{src}")
                bias1.append(f"v_and_b32 v{d0+1}, 0xffff0000, v{src}")
        for i in range(16):
            bias1.append(f"v_sub_f32 v{V_ST+i}, 1.0, v{V_ST+i}")
        self.emit_all(bias1[:16])
        mf = self.qk_mfmas("A", cin="0") + self.qk_mfmas("B", cin="0")
        pre = {k: [f"s_waitcnt lgkmcnt({min(15, 8 + 2*(7-k))})"] for k in range(8)}
        pre.update({8 + k: [f"s_waitcnt lgkmcnt({7-k})"] for k in range(8)})
        gaps = {}
        def put(g, s):
            gaps.setdefault(g, []).append(s)
        for g, s in spread(bias1[16:], 0, 3):
            put(g, s)
        for g, s in spread(self.dma_k_stage(2), 4, 8):
            put(g, s)
        tA = self.blk("A")["IT"]
        bias2 = [f"v_fma_f32 v{V_ST+i}, v{V_ST+i}, s{S_T0}, v{tA+2}" for i in range(16)]
        for g, s in spread(self.ism_part1("A") + bias2, 10, 15):
            put(g, s)
        self.emit_sched(mf, gaps, pre)
        e(f"s_waitcnt vmcnt(8)")
        e("s_barrier")
        self.stamp()
        for ks in range(8):
            e(self.k_read(ks, 0, dst=A_KT, addr=ks, off=0))
        for t in range(2):
            for d in range(4):
                self.emit_all(self.v_reads(t, d, 0))
        p2a = self.ism_part2("A")
        self.emit_all(p2a[:16])
        mf = self.qk_mfmas("A", kf=A_KT, cin=f"v[{V_ST}:{V_ST+15}]", dst=V_ST) + self.pv_mfmas("A")
        pre = {0: ["s_waitcnt lgkmcnt(15)"], 8: ["s_waitcnt lgkmcnt(8)", "s_nop 1"]}
        gaps = {}
        rd = [self.k_read(ks, 1) for ks in range(8)]
        for g, s in spread(p2a[16:], 0, 7):
            put(g, s)
        for g, s in spread(rd, 0, 7):
            put(g, s)
        dm = self.dma_v_stage(2) + self.dma_k_stage(3)
        if self.cfg.get("ahead"):
            dm += self.dma_k_stage(0) + self.dma_v_stage(3)
        rdv = []
        for t in range(2):
            for d in range(4):
                rdv += self.v_reads(t, d, 0, dst=A_VT, addr=28 + d, off=0)
        for g, s in spread(self.ism_part1("B"), 8, 10):
            put(g, s)
        smt = [s for st in self.sm_stream("A", src=V_ST) for s in st]
        for g, s in spread(smt, 12, 19):
            put(g, s)
        for g, s in spread(rdv, 8, 15):
            put(g, s)
        for g, s in spread(dm, 8, 15):
            put(g, s)
        self.emit_sched(mf, gaps, pre)
        e("s_waitcnt lgkmcnt(0)")
        self.stamp()
        carry = spread(self.ism_part2("B"), 0, 13)
        carry = self.iteration(0, carry, vm=16, pva_vf=A_VT, first=True)
        e(f"s_mov_b32 s{S_LOOP}, 7")
        self.label("L_loop")
        t = carry
        for m in (1, 2, 3, 4):
            le = None
            if m == 4:
                le = [f"s_sub_u32 s{S_LOOP}, s{S_LOOP}, 1", f"s_cmp_lg_u32 s{S_LOOP}, 0", "s_cbranch_scc1 L_loop"]
            t = self.iteration(m, t, loop_end=le)
        self.stamp()
        ah = 8 if self.cfg.get("ahead") else 0
        t = self.iteration(29, t, dma=False, vm=8 + ah)
        t = self.iteration(30, t, dma=False, vm=0, kread=False, bar=23)
        self.stamp()
        self.c("---- final PV")

        ds = [(g, s) for g, s in t if s.startswith("ds_")]
        sm = [(g, s) for g, s in t if not s.startswith("ds_")]
        self.emit_all([s for g, s in ds])
        e(f"v_lshlrev_b32 v0, 4, v{ln}")
        e(f"s_lshl_b32 s{S_T0}, s{S_W}, 14")
        e(f"s_xor_b32 s{S_T1}, s{S_T0}, 16384")
        e(f"v_add_u32 v1, s{S_T0}, v0")
        e(f"v_add_u32 v2, s{S_T1}, v0")
        e(f"v_lshlrev_b32 v3, 3, v{ln}")
        e(f"s_lshl_b32 s{S_T0}, s{S_W}, 9")
        e(f"s_add_u32 s{S_T0}, s{S_T0}, {LDS_ML}")
        e(f"s_xor_b32 s{S_T1}, s{S_T0}, 512")
        e(f"v_add_u32 v4, s{S_T0}, v3")
        e(f"v_add_u32 v5, s{S_T1}, v3")
        mf = self.pv_mfmas("A") + self.pv_mfmas("B", dmajor=True)
        gaps = {}
        for g, s in spread([s for g, s in sm], 0, 6):
            put(g, s)
        put(7, f"v_mov_b32 v6, v{V_MB}")
        put(7, f"v_mov_b32 v7, v{V_LB}")
        put(8, f"ds_write_b64 v4, v[6:7]")
        put(8, f"v_and_b32 v18, 31, v{ln}")
        put(8, f"v_lshrrev_b32 v19, 5, v{ln}")
        put(9, f"v_lshlrev_b32 v18, 8, v18")
        put(9, f"v_lshl_add_u32 v18, v19, 4, v18")
        put(9, f"s_lshl_b32 s{S_T0}, s{S_W}, 13")
        put(10, f"v_add_u32 v18, s{S_T0}, v18")
        if 'cst' in self.exp:
            put(10, f"s_lshl_b32 s{S_T2}, s{S_W}, 14")
            put(10, f"s_add_u32 s{S_T2}, s{S_T2}, {LDS_V}")
            put(11, f"v_and_b32 v40, 31, v{ln}")
            put(11, f"v_mul_u32_u24 v40, 272, v40")
            put(11, f"v_lshl_add_u32 v40, v19, 4, v40")
            put(11, f"v_add_u32 v40, s{S_T2}, v40")
            put(10, f"v_lshrrev_b32 v41, 4, v{ln}")
            put(10, f"v_mul_u32_u24 v41, 272, v41")
            put(11, f"v_and_b32 v42, 15, v{ln}")
            put(11, f"v_lshl_add_u32 v41, v42, 4, v41")
            put(11, f"v_add_u32 v41, s{S_T2}, v41")
        for d in range(4):
            for k in range(4):
                r4 = 4 * d + k
                g = 8 + 2 * d + 4 + k // 2
                if d == 3:
                    g = 16 + 2
                if d == 2:
                    g = 16 + 1
                put(g, f"ds_write_b128 v1, a[{A_OB+4*r4}:{A_OB+4*r4+3}] offset:{r4*1024}")
        put(16, "s_nop 7")
        self.emit_sched(mf, gaps, pre={0: ["s_waitcnt lgkmcnt(8)"], 4: ["s_waitcnt lgkmcnt(0)"], 8: ["s_nop 1"]})
        e("s_waitcnt lgkmcnt(0)")
        e("s_barrier")
        self.stamp()
        e(f"ds_read_b64 v[6:7], v5")
        for r4 in range(16):
            e(f"ds_read_b128 v[{128+4*r4}:{128+4*r4+3}], v2 offset:{r4*1024}")
        e("s_waitcnt lgkmcnt(15)")
        e(f"v_max_f32 v8, v{V_MA}, v6")
        e(f"v_sub_f32 v9, v{V_MA}, v8")
        e(f"v_sub_f32 v10, v6, v8")
        e(f"v_exp_f32 v9, v9")
        e(f"v_exp_f32 v10, v10")
        e("s_nop 0")
        e(f"v_mul_f32 v11, v{V_LA}, v9")
        e(f"v_fma_f32 v11, v7, v10, v11")
        e(f"v_mov_b32 v12, v11")
        e("s_nop 1")
        e(f"v_permlane32_swap_b32 v11, v12")
        e("s_nop 1")
        e(f"v_add_f32 v11, v11, v12")
        e(f"v_rcp_f32 v11, v11")
        e("s_nop 0")
        e(f"v_mul_f32 v14, v9, v11")
        e(f"v_mul_f32 v16, v10, v11")
        e(f"v_mov_b32 v15, v14")
        e(f"v_mov_b32 v17, v16")
        cst = 'cst' in self.exp
        stf = self.cfg.get("stf", "")
        for d in range(4):
            for a in range(2):
                base = 16 * d + 8 * a
                r4 = base // 4
                nw = (2 * d + a) if cst else 0
                e(f"s_waitcnt lgkmcnt({min(15, 15-(r4+1)+nw)})")
                pk = 20 + 4 * ((2 * d + a) % 4)
                for k in range(0, 8, 2):
                    o = 128 + base + k
                    e(f"v_pk_mul_f32 v[{o}:{o+1}], v[{o}:{o+1}], v[16:17]")
                for k in range(0, 8, 2):
                    o = 128 + base + k
                    oa = V_OA + base + k
                    e(f"v_pk_fma_f32 v[{o}:{o+1}], v[{oa}:{oa+1}], v[14:15], v[{o}:{o+1}]")
                for k in range(4):
                    o = 128 + base + 2 * k
                    e(f"v_cvt_pk_bf16_f32 v{pk+k}, v{o}, v{o+1}")
                e("s_nop 1")
                e(f"v_permlane32_swap_b32 v{pk}, v{pk+2}")
                e(f"v_permlane32_swap_b32 v{pk+1}, v{pk+3}")
                e("s_nop 1")
                if cst:
                    e(f"ds_write_b128 v40, v[{pk}:{pk+3}] offset:{d*64+a*32}")
                else:
                    e(f"buffer_store_dwordx4 v[{pk}:{pk+3}], v18, s[{S_O}:{S_O+3}], 0 offen offset:{d*64+a*32}{stf}")
        if cst:
            e("s_waitcnt lgkmcnt(0)")
            for k in range(8):
                e(f"ds_read_b128 v[{128+4*k}:{131+4*k}], v41 offset:{k*4*272}")
            e(f"s_lshl_b32 s{S_T0}, s{S_W}, 13")
            e(f"s_add_u32 s{S_T1}, s{S_T0}, 4096")
            for k in range(8):
                e(f"s_waitcnt lgkmcnt({7-k})")
                so = S_T0 if k < 4 else S_T1
                e(f"buffer_store_dwordx4 v[{128+4*k}:{131+4*k}], v0, s[{S_O}:{S_O+3}], s{so} offen offset:{(k%4)*1024}{stf}")
        if self.stamps:
            self.stamp()
            e("s_waitcnt vmcnt(0)")
            self.stamp()
            e("s_memrealtime s[100:101]")
            e("s_waitcnt lgkmcnt(0)")
            e("s_mov_b32 s8, s18"); e("s_mov_b32 s9, s19"); e("s_mov_b32 s10, 0x1000000"); e("s_mov_b32 s11, 0x00020000")
            e("s_lshl_b32 s3, s2, 2")
            e(f"s_add_u32 s3, s3, s{S_W}")
            e("s_lshl_b32 s3, s3, 7")
            e("v_mov_b32 v4, s3")
            e(f"v_cmp_eq_u32 vcc, 0, v{ln}")
            e("s_and_saveexec_b64 s[12:13], vcc")
            for k in range(self.nstamp):
                e(f"s_sub_u32 s3, s{72+2*k}, s72")
                e("v_mov_b32 v6, s3")
                e(f"buffer_store_dword v6, v4, s[8:11], 0 offen offset:{4*k}")
            e("v_mov_b32 v6, s100")
            e(f"buffer_store_dword v6, v4, s[8:11], 0 offen offset:{4*16}")
            e("v_mov_b32 v6, s98")
            e(f"buffer_store_dword v6, v4, s[8:11], 0 offen offset:{4*17}")
        self.label("L_done")
        e("s_endpgm")
        for u, X, src in self.stubs:
            self.label(f"L_stub{u}")
            if src is not None:
                S = self.blk(X)["S"]
                for i in range(16):
                    e(f"v_mov_b32 v{S+i}, v{src+i}")
            e(f"s_call_b64 s[{S_RET}:{S_RET+1}], L_slow{X}")
            e(f"s_branch L_back{u}")
        self.slow_path("A")
        self.slow_path("B")
        L.append('.section .rodata,"a"')
        L.append(".p2align 6")
        L.append(f".amdhsa_kernel {KNAME}")
        L.append("  .amdhsa_next_free_vgpr 512")
        L.append("  .amdhsa_next_free_sgpr 102")
        L.append("  .amdhsa_accum_offset 256")
        L.append("  .amdhsa_group_segment_fixed_size 0")
        L.append("  .amdhsa_kernarg_size 72")
        L.append("  .amdhsa_user_sgpr_count 2")
        L.append("  .amdhsa_user_sgpr_kernarg_segment_ptr 1")
        L.append("  .amdhsa_system_sgpr_workgroup_id_x 1")
        L.append(".end_amdhsa_kernel")
        return "\n".join(L) + "\n"


if __name__ == "__main__":
    ap = argparse.ArgumentParser()
    ap.add_argument("-o", default="k2.s")
    ap.add_argument("--no-nt", action="store_true")
    ap.add_argument("--stamps", action="store_true")
    ap.add_argument("--no-pf", action="store_true")
    ap.add_argument("--exp", default="")
    ap.add_argument("--cfg", default="")
    a = ap.parse_args()
    cfg = eval("dict(" + a.cfg + ")") if a.cfg else None
    g = Gen(nt=not a.no_nt, stamps=a.stamps, code_pf=not a.no_pf, exp=a.exp, cfg=cfg)
    open(a.o, "w").write(g.build())
```

```python
import sys, struct, argparse

KNAME = "standalone__tree_speculative_verify_tree_attention_over_candidate_token_tree__sampling_kernel"
HEADER = open("standalone__tree_speculative_verify_tree_attention_over_candidate_token_tree__sampling.s.ref").read().split("; Override launch")[0]


def f32bits(x):
    return struct.unpack("<I", struct.pack("<f", x))[0]


V_OA = 64
V_SA, V_SB = 128, 144
V_CA, V_CB = 160, 176
V_PA, V_PB = 192, 200
V_EA, V_EB = 208, 212
V_TA, V_TB = 216, 217
V_LA, V_LB = 218, 219
V_MA, V_MB = 220, 221
V_LANE = 222
V_KA = 224
V_VA = 232
V_DK = 236
V_DV = 240
V_SL = 242
V_ST = 32
V_IT = 48
A_OB = 0
A_QA, A_QB = 64, 96
A_KF = 128
A_VF = 160
A_VT = 192
A_KT = 224
S_K, S_V, S_Q, S_KT, S_VT, S_M, S_O = 20, 24, 28, 32, 36, 40, 44
S_W, S_I, S_J = 48, 49, 50
S_KOFF, S_VOFF = 51, 52
S_WB = 53
S_LOOP = 54
S_THR = 55
S_RET = 60
S_T0, S_T1, S_T2, S_T3 = 62, 63, 64, 65
S_BH, S_QH = 66, 67
S_T4 = 59
S_C = 68
S_PC = 70

LDS_V = 65536
LDS_KT = 131072
LDS_VT = 139264
LDS_ML = 147456
THR = 16384.0
SCALE = (128 ** -0.5) * 1.4426950408889634


def spread(ops, g0, g1):
    n = len(ops)
    k = g1 - g0 + 1
    return [(g0 + (i * k) // n, op) for i, op in enumerate(ops)]


class Gen:
    def __init__(self, nt=True, code_pf=True, stamps=False, exp="", cfg=None):
        self.L = []
        self.nt = " nt" if nt else ""
        self.code_pf = code_pf
        self.uid = 0
        self.stubs = []
        self.stamps = stamps
        self.nstamp = 0
        self.exp = exp
        self.cfg = dict(
            kread=[16 + i for i in range(8)],
            vread=[24, 25, 29, 30, 31, 32, 33, 34, 35, 36, 37, 38, 39, 40, 41, 41],
            dmak=[1, 3, 5, 7], dmav=[8, 9, 13, 14],
            sma=10, smb=26, bar=15,
        )
        if cfg:
            self.cfg.update(cfg)

    def e(self, s):
        self.L.append("  " + s)

    def label(self, s):
        self.L.append(s + ":")

    def c(self, s):
        self.L.append("  ; " + s)

    def stamp(self):
        if self.stamps:
            k = self.nstamp
            self.nstamp += 1
            assert k < 13
            self.e(f"s_memtime s[{72+2*k}:{73+2*k}]")

    def blk(self, X):
        if X == "A":
            return dict(S=V_SA, C=V_CA, P=V_PA, E=V_EA, T=V_TA, L=V_LA, M=V_MA, Q=A_QA, IT=V_IT)
        return dict(S=V_SB, C=V_CB, P=V_PB, E=V_EB, T=V_TB, L=V_LB, M=V_MB, Q=A_QB, IT=V_IT + 8)

    def qk_mfmas(self, X, kf=A_KF, cin=None, dst=None):
        r = self.blk(X)
        S = r["S"] if dst is None else dst
        Q = r["Q"]
        C = f"v[{r['C']}:{r['C']+15}]" if cin is None else cin
        out = []
        for ks in range(8):
            c = C if ks == 0 else f"v[{S}:{S+15}]"
            out.append(f"v_mfma_f32_32x32x16_bf16 v[{S}:{S+15}], a[{kf+4*ks}:{kf+4*ks+3}], a[{Q+4*ks}:{Q+4*ks+3}], {c}")
        return out

    def pv_mfmas(self, X, vf=A_VF, dmajor=False):
        r = self.blk(X)
        P = r["P"]
        out = []
        order = [(t, d) for t in range(2) for d in range(4)]
        if dmajor:
            order = [(t, d) for d in range(4) for t in range(2)]
        for t, d in order:
            f = vf + 4 * (4 * t + d)
            if X == "A":
                o = f"v[{V_OA+16*d}:{V_OA+16*d+15}]"
            else:
                o = f"a[{A_OB+16*d}:{A_OB+16*d+15}]"
            out.append(f"v_mfma_f32_32x32x16_bf16 {o}, a[{f}:{f+3}], v[{P+4*t}:{P+4*t+3}], {o}")
        return out

    def sm_stream(self, X, src=None):
        r = self.blk(X)
        S, P, E, T, Lr = r["S"], r["P"], r["E"], r["T"], r["L"]
        if src is not None:
            S = src
        steps = []
        for e in range(16):
            st = [f"v_exp_f32 v{E+e%4}, v{S+e}"]
            if e == 2:
                st.append(f"v_add_f32 v{T}, v{E+0}, v{E+1}")
            elif e > 2:
                st.append(f"v_add_f32 v{T}, v{T}, v{E+(e-1)%4}")
            if e >= 2 and e % 2 == 0:
                st.append(f"v_cvt_pk_bf16_f32 v{P+(e-2)//2}, v{E+(e-2)%4}, v{E+(e-1)%4}")
            steps.append(st)
        steps.append([f"v_add_f32 v{T}, v{T}, v{E+15%4}", f"v_cvt_pk_bf16_f32 v{P+7}, v{E+14%4}, v{E+15%4}"])
        steps.append([f"v_cmp_nge_f32 vcc, s{S_THR}, v{T}"])
        self.uid += 1
        u = self.uid
        self.stubs.append((u, X, src))
        steps.append([f"s_cbranch_vccnz L_stub{u}", f"L_back{u}:", f"v_add_f32 v{Lr}, v{Lr}, v{T}"])
        return steps

    def ism_part1(self, X):
        r = self.blk(X)
        S, M, t = r["S"], r["M"], r["IT"]
        return [
            f"v_max3_f32 v{t}, v{S}, v{S+1}, v{S+2}",
            f"v_max3_f32 v{t+1}, v{S+3}, v{S+4}, v{S+5}",
            f"v_max3_f32 v{t+2}, v{S+6}, v{S+7}, v{S+8}",
            f"v_max3_f32 v{t+3}, v{S+9}, v{S+10}, v{S+11}",
            f"v_max3_f32 v{t+4}, v{S+12}, v{S+13}, v{S+14}",
            f"v_max3_f32 v{t}, v{t}, v{t+1}, v{S+15}",
            f"v_max3_f32 v{t+2}, v{t+2}, v{t+3}, v{t+4}",
            f"v_max_f32 v{t}, v{t}, v{t+2}",
            f"v_mov_b32 v{t+1}, v{t}",
            "s_nop 1",
            f"v_permlane32_swap_b32 v{t}, v{t+1}",
            "s_nop 1",
            f"v_max_f32 v{M}, v{t}, v{t+1}",
            f"v_sub_f32 v{t+2}, 0, v{M}",
        ]

    def ism_part2(self, X):
        r = self.blk(X)
        S, C, P, E, Lr, M, t = r["S"], r["C"], r["P"], r["E"], r["L"], r["M"], r["IT"]
        ops = []
        for i in range(16):
            ops.append(f"v_sub_f32 v{S+i}, v{S+i}, v{M}")
        ex = []
        for e in range(16):
            ex.append(f"v_exp_f32 v{E+e%4}, v{S+e}")
            ex.append(f"v_mov_b32 v{C+e}, v{t+2}")
            if e == 2:
                ex.append(f"v_add_f32 v{Lr}, v{E+0}, v{E+1}")
            elif e > 2:
                ex.append(f"v_add_f32 v{Lr}, v{Lr}, v{E+(e-1)%4}")
            if e >= 2 and e % 2 == 0:
                ex.append(f"v_cvt_pk_bf16_f32 v{P+(e-2)//2}, v{E+(e-2)%4}, v{E+(e-1)%4}")
        ex.append(f"v_add_f32 v{Lr}, v{Lr}, v{E+3}")
        ex.append(f"v_cvt_pk_bf16_f32 v{P+7}, v{E+2}, v{E+3}")
        return ops + ex

    def emit_line(self, s):
        if s.endswith(":"):
            self.label(s[:-1])
        else:
            self.e(s)

    def k_read(self, ks, slot, dst=A_KF, addr=None, off=None):
        a = V_KA + ks if addr is None else addr
        o = slot * 16384 if off is None else off
        return f"ds_read_b128 a[{dst+4*ks}:{dst+4*ks+3}], v{a} offset:{o}"

    def v_reads(self, t, d, slot, dst=A_VF, addr=None, off=None):
        a = V_VA + d if addr is None else addr
        o = slot * 16384 if off is None else off
        f = dst + 4 * (4 * t + d)
        return [f"ds_read_b64_tr_b16 a[{f}:{f+1}], v{a} offset:{o+t*4096}",
                f"ds_read_b64_tr_b16 a[{f+2}:{f+3}], v{a} offset:{o+t*4096+2048}"]

    def dma_k(self, q, soff=S_KOFF, srd=S_K, v=None):
        vv = V_DK + q if v is None else v
        return f"buffer_load_dwordx4 v{vv}, s[{srd}:{srd+3}], s{soff} offen offset:{q*1024}{self.nt} lds"

    def dma_v(self, q, soff=S_VOFF, srd=S_V, v=None):
        vv = V_DV if v is None else v
        return f"buffer_load_dwordx4 v{vv}, s[{srd}:{srd+3}], s{soff} offen offset:{q*1024}{self.nt} lds"

    def dma_k_stage(self, slot):
        return ([f"s_add_u32 m0, s{S_WB}, {slot*16384}", "s_nop 0"] + [self.dma_k(q) for q in range(4)]
                + [f"s_add_u32 s{S_KOFF}, s{S_KOFF}, 16384"])

    def dma_v_stage(self, slot):
        return ([f"s_add_u32 m0, s{S_WB}, {LDS_V+slot*16384}", "s_nop 0"] + [self.dma_v(q) for q in range(4)]
                + [f"s_add_u32 s{S_VOFF}, s{S_VOFF}, 16384"])

    def emit_all(self, lines):
        for s in lines:
            self.emit_line(s)

    def emit_sched(self, mfmas, gaps, pre=None):
        pre = pre or {}
        n = len(mfmas)
        for k in sorted(g for g in gaps if g < 0):
            for s in gaps[k]:
                self.emit_line(s)
        for k in range(n):
            for s in pre.get(k, []):
                self.emit_line(s)
            self.e(mfmas[k])
            for s in gaps.get(k, []):
                self.emit_line(s)
        for k in sorted(g for g in gaps if g >= n):
            for s in gaps[k]:
                self.emit_line(s)

    def iteration(self, m, carry, dma=True, vm=16, pva_vf=A_VF, kread=True, loop_end=None, bar=None,
                  first=False):
        cfg = self.cfg
        mm = m % 4
        self.c(f"---- iteration {m} (mod 4 = {mm})")
        items = []

        def put(g, s):
            if 'novalu' in self.exp and s.startswith('v_'):
                return
            if 'nods' in self.exp and s.startswith('ds_'):
                return
            items.append((g, s))

        mf = self.qk_mfmas("A") + self.pv_mfmas("A", pva_vf) + self.qk_mfmas("B") + self.pv_mfmas("B")
        for g, s in carry:
            put(g, s)
        for k, st in enumerate(self.sm_stream("A")):
            for s in st:
                put(cfg["sma"] + k, s)
        for k, st in enumerate(self.sm_stream("B")):
            for s in st:
                put(cfg["smb"] + k, s)
        if dma and 'nodma' not in self.exp:
            gk, gv = cfg["dmak"], cfg["dmav"]
            ah = 1 if cfg.get("ahead") else 0
            if ah:
                assert gk[0] - 1 >= cfg["bar"]
            mm = (mm + ah) % 4
            put(gk[0] - 1, f"s_add_u32 m0, s{S_WB}, {(mm)*16384}")
            for q, g in enumerate(gk):
                put(g, self.dma_k(q))
            put(gk[3], f"s_add_u32 m0, s{S_WB}, {LDS_V+((mm+3)%4)*16384}")
            put(gk[3], f"s_add_u32 s{S_KOFF}, s{S_KOFF}, 16384")
            assert gv[0] > gk[3]
            for q, g in enumerate(gv):
                put(g, self.dma_v(q))
            put(gv[3], f"s_add_u32 s{S_VOFF}, s{S_VOFF}, 16384")
            mm = m % 4
        bg = cfg["bar"] if bar is None else bar
        put(bg, f"s_waitcnt vmcnt({vm})")
        if 'nobar' not in self.exp:
            put(bg, "s_barrier")
        if kread:
            for ks in range(8):
                assert cfg["kread"][ks] >= 16 + ks and cfg["kread"][ks] > bg
                put(cfg["kread"][ks], self.k_read(ks, (mm + 2) % 4))
        vr = []
        for t in range(2):
            for d in range(4):
                vr += self.v_reads(t, d, (mm + 1) % 4)
        for k, s in enumerate(vr):
            g = max(cfg["vread"][k], bg + 1)
            assert g >= 24 + k // 2
            put(g, s)
        if loop_end:
            for s in loop_end:
                put(31, s)
        gaps = {}
        nxt = []
        items.sort(key=lambda x: (x[0], 0 if (x[1].startswith("s_waitcnt vmcnt") or x[1] == "s_barrier") and cfg.get("ahead") else 1))
        for g, s in items:
            if g >= 32:
                nxt.append((g - 32, s))
            else:
                gaps.setdefault(g, []).append(s)
        seq = sorted([(cfg["kread"][ks], 0, ks, "K") for ks in range(8)] +
                     [(cfg["vread"][k], 1, k, "V") for k in range(16)])
        pre = {}
        def wait_for(pos, pred):
            issued = [x for x in seq if x[0] < 32 + pos]
            last = max(i for i, x in enumerate(issued) if pred(x))
            n = len(issued) - 1 - last
            return min(n, 15)
        if not first:
            pre[0] = [f"s_waitcnt lgkmcnt({wait_for(0, lambda x: x[3]=='K')})"]
            pre[8] = [f"s_waitcnt lgkmcnt({wait_for(8, lambda x: x[3]=='V' and x[2] < 8)})"]
            pre[12] = [f"s_waitcnt lgkmcnt({wait_for(12, lambda x: x[3]=='V')})"]
        self.emit_sched(mf, gaps, pre)
        return nxt

    def slow_path(self, X):
        r = self.blk(X)
        S, C, P, T, Lr, M = r["S"], r["C"], r["P"], r["T"], r["L"], r["M"]
        t = V_SL
        self.label(f"L_slow{X}")
        e = self.e
        e(f"v_max3_f32 v{t}, v{S}, v{S+1}, v{S+2}")
        e(f"v_max3_f32 v{t+1}, v{S+3}, v{S+4}, v{S+5}")
        e(f"v_max3_f32 v{t+2}, v{S+6}, v{S+7}, v{S+8}")
        e(f"v_max3_f32 v{t+3}, v{S+9}, v{S+10}, v{S+11}")
        e(f"v_max3_f32 v{t+4}, v{S+12}, v{S+13}, v{S+14}")
        e(f"v_max3_f32 v{t}, v{t}, v{t+1}, v{S+15}")
        e(f"v_max3_f32 v{t+2}, v{t+2}, v{t+3}, v{t+4}")
        e(f"v_max_f32 v{t}, v{t}, v{t+2}")
        e(f"v_mov_b32 v{t+1}, v{t}")
        e("s_nop 1")
        e(f"v_permlane32_swap_b32 v{t}, v{t+1}")
        e("s_nop 1")
        e(f"v_max3_f32 v{t}, v{t}, v{t+1}, 0")
        e(f"v_add_f32 v{M}, v{M}, v{t}")
        e(f"v_exp_f32 v{t+1}, -v{t}")
        e(f"v_sub_f32 v{t+2}, 0, v{M}")
        for i in range(16):
            e(f"v_mov_b32 v{C+i}, v{t+2}")
        e(f"v_mul_f32 v{Lr}, v{Lr}, v{t+1}")
        if X == "A":
            for i in range(64):
                e(f"v_mul_f32 v{V_OA+i}, v{V_OA+i}, v{t+1}")
        else:
            for i in range(0, 64, 4):
                for k in range(4):
                    e(f"v_accvgpr_read_b32 v{t+4+k}, a{A_OB+i+k}")
                for k in range(4):
                    e(f"v_mul_f32 v{t+4+k}, v{t+4+k}, v{t+1}")
                for k in range(4):
                    e(f"v_accvgpr_write_b32 a{A_OB+i+k}, v{t+4+k}")
        for i in range(0, 16, 4):
            for k in range(4):
                e(f"v_sub_f32 v{t+4+k}, v{S+i+k}, v{t}")
            for k in range(4):
                e(f"v_exp_f32 v{t+4+k}, v{t+4+k}")
            e("s_nop 0")
            if i == 0:
                e(f"v_add_f32 v{T}, v{t+4}, v{t+5}")
            else:
                e(f"v_add_f32 v{T}, v{T}, v{t+4}")
                e(f"v_add_f32 v{T}, v{T}, v{t+5}")
            e(f"v_add_f32 v{T}, v{T}, v{t+6}")
            e(f"v_add_f32 v{T}, v{T}, v{t+7}")
            e(f"v_cvt_pk_bf16_f32 v{P+i//2}, v{t+4}, v{t+5}")
            e(f"v_cvt_pk_bf16_f32 v{P+i//2+1}, v{t+6}, v{t+7}")
        e("s_nop 1")
        e(f"s_setpc_b64 s[{S_RET}:{S_RET+1}]")

    def srd(self, d, lo, hi, off, size):
        e = self.e
        e(f"s_add_u32 s{d}, s{lo}, s{off}")
        e(f"s_addc_u32 s{d+1}, s{hi}, 0")
        e(f"s_mov_b32 s{d+2}, {size}")
        e(f"s_mov_b32 s{d+3}, 0x00020000")

    def build(self):
        e = self.e
        L = self.L
        L.append(HEADER.rstrip())
        L.append("; @launch grid=(256,1,1) block=(256,1,1) lds=163840")
        L.append('.amdgcn_target "amdgcn-amd-amdhsa--gfx950"')
        L.append(".text")
        L.append(f".globl {KNAME}")
        L.append(".p2align 8")
        L.append(f".type {KNAME},@function")
        self.label(KNAME)
        self.stamp()
        if self.stamps:
            e("s_memrealtime s[98:99]")
        e("s_cmp_ge_u32 s2, 256")
        e("s_cbranch_scc1 L_done")
        e("s_load_dwordx8 s[4:11], s[0:1], 0")
        e("s_load_dwordx4 s[12:15], s[0:1], 32")
        e("s_load_dwordx2 s[16:17], s[0:1], 48")
        if self.stamps:
            e(f"s_load_dwordx2 s[18:19], s[0:1], {56 if 'dbgst' in self.exp else 64}")
        e(f"s_getpc_b64 s[{S_PC}:{S_PC+1}]")
        e(f"v_lshrrev_b32 v1, 6, v0")
        e(f"v_and_b32 v{V_LANE}, 63, v0")
        ln = V_LANE
        if self.code_pf:
            e(f"v_lshlrev_b32 v13, 4, v0")
            e("s_cmp_ge_u32 s2, 32")
            e("s_cbranch_scc1 L_nopf")
            for k in range(4):
                e(f"global_load_dwordx4 v[24:27], v13, s[{S_PC}:{S_PC+1}]")
                e(f"v_add_u32 v13, 0x1000, v13")
            self.label("L_nopf")
        e("s_and_b32 s3, s2, 7")
        e(f"v_readfirstlane_b32 s{S_W}, v1")
        e(f"s_lshr_b32 s{S_BH}, s2, 4")
        e(f"s_lshl_b32 s{S_BH}, s{S_BH}, 3")
        e(f"s_add_u32 s{S_BH}, s{S_BH}, s3")
        if 'samebh' in self.exp:
            e(f"s_and_b32 s{S_BH}, s{S_BH}, 7")
        e(f"s_lshr_b32 s{S_QH}, s2, 3")
        e(f"s_and_b32 s{S_QH}, s{S_QH}, 1")
        e(f"s_lshr_b32 s{S_I}, s{S_W}, 1")
        e(f"s_and_b32 s{S_J}, s{S_W}, 1")
        e(f"s_lshl_b32 s{S_WB}, s{S_W}, 12")
        e(f"v_lshrrev_b32 v1, 4, v{ln}")
        e(f"v_and_b32 v2, 15, v{ln}")
        e(f"v_lshlrev_b32 v3, 8, v1")
        e(f"v_add_u32 v3, s{S_WB}, v3")
        for q in range(4):
            e(f"v_add_u32 v4, {4*q}, v1")
            e(f"v_xor_b32 v4, v4, v2")
            e(f"v_lshl_add_u32 v{V_DK+q}, v4, 4, v3")
        e(f"v_lshlrev_b32 v4, 2, v1")
        e(f"v_xor_b32 v4, v4, v2")
        e(f"v_lshl_add_u32 v{V_DV}, v4, 4, v3")
        e(f"v_and_b32 v5, 31, v{ln}")
        e(f"v_lshrrev_b32 v6, 5, v{ln}")
        e(f"v_lshlrev_b32 v7, 6, v5")
        e(f"v_lshl_add_u32 v7, v6, 3, v7")
        e(f"v_lshlrev_b32 v14, 4, v{ln}")
        e(f"s_lshl_b32 s{S_T0}, s{S_BH}, 16")
        e(f"s_lshl_b32 s{S_T1}, s{S_QH}, 15")
        e(f"s_add_u32 s{S_T0}, s{S_T0}, s{S_T1}")
        e(f"s_lshl_b32 s{S_T1}, s{S_BH}, 19")
        e(f"s_lshr_b32 s{S_T2}, s{S_BH}, 2")
        e(f"s_lshl_b32 s{S_T2}, s{S_T2}, 11")
        e(f"s_lshl_b32 s{S_T3}, s{S_W}, 13")
        e(f"s_mov_b32 s{S_KOFF}, 0")
        e(f"s_mov_b32 s{S_VOFF}, 0")
        e("s_waitcnt lgkmcnt(0)")
        self.stamp()
        self.srd(S_Q, 4, 5, S_T0, 32768)
        for k in range(4):
            e(f"buffer_load_dwordx4 v[{128+4*k}:{131+4*k}], v14, s[{S_Q}:{S_Q+3}], s{S_T3} offen offset:{k*1024}{self.nt}")
        e(f"s_add_u32 s{S_T3}, s{S_T3}, 4096")
        self.srd(S_K, 6, 7, S_T1, 524288)
        for k in range(4):
            e(f"buffer_load_dwordx4 v[{144+4*k}:{147+4*k}], v14, s[{S_Q}:{S_Q+3}], s{S_T3} offen offset:{k*1024}{self.nt}")
        self.emit_all(self.dma_k_stage(0))
        self.srd(S_M, 14, 15, S_T2, 2048)
        for g in range(4):
            e(f"buffer_load_dwordx2 v[{16+2*g}:{17+2*g}], v7, s[{S_M}:{S_M+3}], 0 offen offset:{16*g}")
        self.srd(S_V, 8, 9, S_T1, 524288)
        late = 'late' in self.exp
        deferred = []
        def issue(lines):
            if late:
                deferred.append(lines)
            else:
                self.emit_all(lines)
        issue(self.dma_v_stage(0))
        e(f"s_lshl_b32 s{S_T1}, s{S_BH}, 13")
        self.srd(S_KT, 10, 11, S_T1, 8192)
        self.srd(S_VT, 12, 13, S_T1, 8192)
        self.srd(S_O, 16, 17, S_T0, 32768)
        e(f"s_lshl_b32 s{S_T1}, s{S_W}, 11")
        e(f"s_lshl_b32 s{S_T2}, s{S_J}, 3")
        e(f"v_lshlrev_b32 v8, 8, v1")
        e(f"v_add_u32 v8, s{S_T1}, v8")
        for q in range(2):
            e(f"v_add_u32 v9, s{S_T2}, v1")
            e(f"v_add_u32 v9, {4*q}, v9")
            e(f"v_xor_b32 v9, v9, v2")
            e(f"v_lshl_add_u32 v{10+q}, v9, 4, v8")
        e(f"v_subrev_u32 v12, s{S_T1}, v{V_DV}")
        e(f"s_mov_b32 s{S_T3}, 0")
        e(f"s_mov_b32 s{S_T4}, s{S_T1}")
        e(f"v_mov_b32 v15, v10")
        e(f"v_mov_b32 v13, v11")
        issue([f"s_add_u32 m0, s{S_T4}, {LDS_KT}", "s_nop 0"] + [self.dma_k(q, soff=S_T3, srd=S_KT, v=(15, 13)[q]) for q in range(2)])
        e(f"s_lshl_b32 s{S_T2}, s{S_J}, 13")
        e(f"v_lshlrev_b32 v8, 8, v5")
        e(f"v_add_u32 v8, s{S_T2}, v8")
        e(f"v_xor_b32 v9, v6, v2")
        for ks in range(8):
            e(f"v_xor_b32 v10, {2*ks}, v9")
            e(f"v_lshl_add_u32 v{V_KA+ks}, v10, 4, v8")
        e(f"v_lshrrev_b32 v9, 2, v2")
        e(f"v_lshl_add_u32 v10, v6, 2, v9")
        e(f"v_lshlrev_b32 v10, 8, v10")
        e(f"s_add_u32 s{S_T2}, s{S_T2}, {LDS_V}")
        e(f"v_add_u32 v10, s{S_T2}, v10")
        e(f"v_and_b32 v11, 1, v1")
        e(f"v_lshl_add_u32 v10, v11, 5, v10")
        e(f"v_and_b32 v11, 3, v{ln}")
        e(f"v_lshl_add_u32 v10, v11, 3, v10")
        for d in range(4):
            e(f"v_xor_b32 v11, {d}, v9")
            e(f"v_lshl_add_u32 v{V_VA+d}, v11, 6, v10")
        issue(self.dma_k_stage(1))
        for i in range(64):
            e(f"v_mov_b32 v{V_OA+i}, 0")
        issue([f"s_add_u32 m0, s{S_T4}, {LDS_VT}", "s_nop 0"] + [self.dma_v(q, soff=S_T3, srd=S_VT, v=12) for q in range(2)])
        for i in range(64):
            e(f"v_accvgpr_write_b32 a{A_OB+i}, 0")
        e(f"s_mov_b32 s{S_THR}, {f32bits(THR):#x}")
        e(f"s_mov_b32 s{S_C}, {f32bits(SCALE):#x}")
        e(f"s_mov_b32 s{S_C+1}, {f32bits(SCALE):#x}")
        e(f"s_lshl_b32 s{S_T1}, s{S_I}, 16")
        e(f"s_add_u32 s{S_T1}, s{S_T1}, 49152")
        e(f"s_lshl_b32 s{S_T2}, s{S_J}, 13")
        e(f"s_add_u32 s{S_T2}, s{S_T2}, s{S_T1}")
        e(f"s_sub_u32 s{S_T2}, s{S_T2}, s{S_WB}")
        for q in range(4):
            e(f"v_add_u32 v{8+q}, s{S_T2}, v{V_DK+q}")
        e(f"s_lshl_b32 s{S_T2}, s{S_J}, 14")
        e(f"s_sub_u32 s{S_T2}, s{S_T1}, s{S_T2}")
        e(f"s_add_u32 s{S_T2}, s{S_T2}, 8192")
        for ks in range(8):
            e(f"v_add_u32 v{48+ks}, s{S_T1}, v{V_KA+ks}")
            e(f"v_add_u32 v{56+ks}, s{S_T2}, v{V_KA+ks}")
        e(f"s_lshl_b32 s{S_T2}, s{S_J}, 13")
        e(f"s_sub_u32 s{S_T1}, {LDS_KT}, s{S_T2}")
        e(f"s_sub_u32 s{S_T2}, {LDS_VT-LDS_V}, s{S_T2}")
        for ks in range(8):
            e(f"v_add_u32 v{ks}, s{S_T1}, v{V_KA+ks}")
        for d in range(4):
            e(f"v_add_u32 v{28+d}, s{S_T2}, v{V_VA+d}")
        self.stamp()
        extra = self.dma_v_stage(1)
        nv = 8 if late else 20
        for k in range(8):
            e(f"s_waitcnt vmcnt({nv + 7 - k})")
            if k == 0:
                self.stamp()
            if late and k % 2 == 0 and deferred:
                lines = deferred.pop(0)
                self.emit_all(lines)
                nv += sum(1 for x in lines if x.startswith("buffer_load"))
            for x in range(4):
                src = 128 + 4 * k + x
                t = 192 + 2 * x
                e(f"v_lshlrev_b32 v{t}, 16, v{src}")
                e(f"v_and_b32 v{t+1}, 0xffff0000, v{src}")
            for x in range(4):
                t = 192 + 2 * x
                e(f"v_pk_mul_f32 v[{t}:{t+1}], v[{t}:{t+1}], s[{S_C}:{S_C+1}]")
            o = 200 + 4 * (k % 2)
            for x in range(4):
                t = 192 + 2 * x
                e(f"v_cvt_pk_bf16_f32 v{o+x}, v{t}, v{t+1}")
            e(f"ds_write_b128 v{8+k%4}, v[{o}:{o+3}] offset:{(k>>2)*4096+(k&3)*1024}")
        self.emit_all(extra)
        e(f"s_waitcnt vmcnt(16) lgkmcnt(0)")
        e("s_barrier")
        self.stamp()
        for ks in range(8):
            e(f"ds_read_b128 a[{A_QA+4*ks}:{A_QA+4*ks+3}], v{48+ks}")
            e(self.k_read(ks, 0))
        for ks in range(8):
            e(f"ds_read_b128 a[{A_QB+4*ks}:{A_QB+4*ks+3}], v{56+ks}")
        e(f"s_mov_b32 s{S_T0}, {f32bits(-1e9*1.4426950408889634):#x}")
        bias1 = []
        for g in range(4):
            for k in range(2):
                src = 16 + 2 * g + k
                d0 = V_ST + 4 * g + 2 * k
                bias1.append(f"v_lshlrev_b32 v{d0}, 16, v{src}")
                bias1.append(f"v_and_b32 v{d0+1}, 0xffff0000, v{src}")
        for i in range(16):
            bias1.append(f"v_sub_f32 v{V_ST+i}, 1.0, v{V_ST+i}")
        self.emit_all(bias1[:16])
        mf = self.qk_mfmas("A", cin="0") + self.qk_mfmas("B", cin="0")
        pre = {k: [f"s_waitcnt lgkmcnt({min(15, 8 + 2*(7-k))})"] for k in range(8)}
        pre.update({8 + k: [f"s_waitcnt lgkmcnt({7-k})"] for k in range(8)})
        gaps = {}
        def put(g, s):
            gaps.setdefault(g, []).append(s)
        for g, s in spread(bias1[16:], 0, 3):
            put(g, s)
        for g, s in spread(self.dma_k_stage(2), 4, 8):
            put(g, s)
        tA = self.blk("A")["IT"]
        bias2 = [f"v_fma_f32 v{V_ST+i}, v{V_ST+i}, s{S_T0}, v{tA+2}" for i in range(16)]
        for g, s in spread(self.ism_part1("A") + bias2, 10, 15):
            put(g, s)
        self.emit_sched(mf, gaps, pre)
        e(f"s_waitcnt vmcnt(8)")
        e("s_barrier")
        self.stamp()
        for ks in range(8):
            e(self.k_read(ks, 0, dst=A_KT, addr=ks, off=0))
        for t in range(2):
            for d in range(4):
                self.emit_all(self.v_reads(t, d, 0))
        p2a = self.ism_part2("A")
        self.emit_all(p2a[:16])
        mf = self.qk_mfmas("A", kf=A_KT, cin=f"v[{V_ST}:{V_ST+15}]", dst=V_ST) + self.pv_mfmas("A")
        pre = {0: ["s_waitcnt lgkmcnt(15)"], 8: ["s_waitcnt lgkmcnt(8)", "s_nop 1"]}
        gaps = {}
        rd = [self.k_read(ks, 1) for ks in range(8)]
        for g, s in spread(p2a[16:], 0, 7):
            put(g, s)
        for g, s in spread(rd, 0, 7):
            put(g, s)
        dm = self.dma_v_stage(2) + self.dma_k_stage(3)
        if self.cfg.get("ahead"):
            dm += self.dma_k_stage(0) + self.dma_v_stage(3)
        rdv = []
        for t in range(2):
            for d in range(4):
                rdv += self.v_reads(t, d, 0, dst=A_VT, addr=28 + d, off=0)
        for g, s in spread(self.ism_part1("B"), 8, 10):
            put(g, s)
        smt = [s for st in self.sm_stream("A", src=V_ST) for s in st]
        for g, s in spread(smt, 12, 19):
            put(g, s)
        for g, s in spread(rdv, 8, 15):
            put(g, s)
        for g, s in spread(dm, 8, 15):
            put(g, s)
        self.emit_sched(mf, gaps, pre)
        e("s_waitcnt lgkmcnt(0)")
        self.stamp()
        carry = spread(self.ism_part2("B"), 0, 13)
        carry = self.iteration(0, carry, vm=16, pva_vf=A_VT, first=True)
        e(f"s_mov_b32 s{S_LOOP}, 7")
        self.label("L_loop")
        t = carry
        for m in (1, 2, 3, 4):
            le = None
            if m == 4:
                le = [f"s_sub_u32 s{S_LOOP}, s{S_LOOP}, 1", f"s_cmp_lg_u32 s{S_LOOP}, 0", "s_cbranch_scc1 L_loop"]
            t = self.iteration(m, t, loop_end=le)
        self.stamp()
        ah = 8 if self.cfg.get("ahead") else 0
        t = self.iteration(29, t, dma=False, vm=8 + ah)
        t = self.iteration(30, t, dma=False, vm=0, kread=False, bar=23)
        self.stamp()
        self.c("---- final PV")

        ds = [(g, s) for g, s in t if s.startswith("ds_")]
        sm = [(g, s) for g, s in t if not s.startswith("ds_")]
        self.emit_all([s for g, s in ds])
        e(f"v_lshlrev_b32 v0, 4, v{ln}")
        e(f"s_lshl_b32 s{S_T0}, s{S_W}, 14")
        e(f"s_xor_b32 s{S_T1}, s{S_T0}, 16384")
        e(f"v_add_u32 v1, s{S_T0}, v0")
        e(f"v_add_u32 v2, s{S_T1}, v0")
        e(f"v_lshlrev_b32 v3, 3, v{ln}")
        e(f"s_lshl_b32 s{S_T0}, s{S_W}, 9")
        e(f"s_add_u32 s{S_T0}, s{S_T0}, {LDS_ML}")
        e(f"s_xor_b32 s{S_T1}, s{S_T0}, 512")
        e(f"v_add_u32 v4, s{S_T0}, v3")
        e(f"v_add_u32 v5, s{S_T1}, v3")
        mf = self.pv_mfmas("A") + self.pv_mfmas("B", dmajor=True)
        gaps = {}
        for g, s in spread([s for g, s in sm], 0, 6):
            put(g, s)
        put(7, f"v_mov_b32 v6, v{V_MB}")
        put(7, f"v_mov_b32 v7, v{V_LB}")
        put(8, f"ds_write_b64 v4, v[6:7]")
        put(8, f"v_and_b32 v18, 31, v{ln}")
        put(8, f"v_lshrrev_b32 v19, 5, v{ln}")
        put(9, f"v_lshlrev_b32 v18, 8, v18")
        put(9, f"v_lshl_add_u32 v18, v19, 4, v18")
        put(9, f"s_lshl_b32 s{S_T0}, s{S_W}, 13")
        put(10, f"v_add_u32 v18, s{S_T0}, v18")
        if 'cst' in self.exp:
            put(10, f"s_lshl_b32 s{S_T2}, s{S_W}, 14")
            put(10, f"s_add_u32 s{S_T2}, s{S_T2}, {LDS_V}")
            put(11, f"v_and_b32 v40, 31, v{ln}")
            put(11, f"v_mul_u32_u24 v40, 272, v40")
            put(11, f"v_lshl_add_u32 v40, v19, 4, v40")
            put(11, f"v_add_u32 v40, s{S_T2}, v40")
            put(10, f"v_lshrrev_b32 v41, 4, v{ln}")
            put(10, f"v_mul_u32_u24 v41, 272, v41")
            put(11, f"v_and_b32 v42, 15, v{ln}")
            put(11, f"v_lshl_add_u32 v41, v42, 4, v41")
            put(11, f"v_add_u32 v41, s{S_T2}, v41")
        for d in range(4):
            for k in range(4):
                r4 = 4 * d + k
                g = 8 + 2 * d + 4 + k // 2
                if d == 3:
                    g = 16 + 2
                if d == 2:
                    g = 16 + 1
                put(g, f"ds_write_b128 v1, a[{A_OB+4*r4}:{A_OB+4*r4+3}] offset:{r4*1024}")
        put(16, "s_nop 7")
        self.emit_sched(mf, gaps, pre={0: ["s_waitcnt lgkmcnt(8)"], 4: ["s_waitcnt lgkmcnt(0)"], 8: ["s_nop 1"]})
        e("s_waitcnt lgkmcnt(0)")
        e("s_barrier")
        self.stamp()
        e(f"ds_read_b64 v[6:7], v5")
        for r4 in range(16):
            e(f"ds_read_b128 v[{128+4*r4}:{128+4*r4+3}], v2 offset:{r4*1024}")
        e("s_waitcnt lgkmcnt(15)")
        e(f"v_max_f32 v8, v{V_MA}, v6")
        e(f"v_sub_f32 v9, v{V_MA}, v8")
        e(f"v_sub_f32 v10, v6, v8")
        e(f"v_exp_f32 v9, v9")
        e(f"v_exp_f32 v10, v10")
        e("s_nop 0")
        e(f"v_mul_f32 v11, v{V_LA}, v9")
        e(f"v_fma_f32 v11, v7, v10, v11")
        e(f"v_mov_b32 v12, v11")
        e("s_nop 1")
        e(f"v_permlane32_swap_b32 v11, v12")
        e("s_nop 1")
        e(f"v_add_f32 v11, v11, v12")
        e(f"v_rcp_f32 v11, v11")
        e("s_nop 0")
        e(f"v_mul_f32 v14, v9, v11")
        e(f"v_mul_f32 v16, v10, v11")
        e(f"v_mov_b32 v15, v14")
        e(f"v_mov_b32 v17, v16")
        cst = 'cst' in self.exp
        stf = self.cfg.get("stf", "")
        for d in range(4):
            for a in range(2):
                base = 16 * d + 8 * a
                r4 = base // 4
                nw = (2 * d + a) if cst else 0
                e(f"s_waitcnt lgkmcnt({min(15, 15-(r4+1)+nw)})")
                pk = 20 + 4 * ((2 * d + a) % 4)
                for k in range(0, 8, 2):
                    o = 128 + base + k
                    e(f"v_pk_mul_f32 v[{o}:{o+1}], v[{o}:{o+1}], v[16:17]")
                for k in range(0, 8, 2):
                    o = 128 + base + k
                    oa = V_OA + base + k
                    e(f"v_pk_fma_f32 v[{o}:{o+1}], v[{oa}:{oa+1}], v[14:15], v[{o}:{o+1}]")
                for k in range(4):
                    o = 128 + base + 2 * k
                    e(f"v_cvt_pk_bf16_f32 v{pk+k}, v{o}, v{o+1}")
                e("s_nop 1")
                e(f"v_permlane32_swap_b32 v{pk}, v{pk+2}")
                e(f"v_permlane32_swap_b32 v{pk+1}, v{pk+3}")
                e("s_nop 1")
                if cst:
                    e(f"ds_write_b128 v40, v[{pk}:{pk+3}] offset:{d*64+a*32}")
                else:
                    e(f"buffer_store_dwordx4 v[{pk}:{pk+3}], v18, s[{S_O}:{S_O+3}], 0 offen offset:{d*64+a*32}{stf}")
        if cst:
            e("s_waitcnt lgkmcnt(0)")
            for k in range(8):
                e(f"ds_read_b128 v[{128+4*k}:{131+4*k}], v41 offset:{k*4*272}")
            e(f"s_lshl_b32 s{S_T0}, s{S_W}, 13")
            e(f"s_add_u32 s{S_T1}, s{S_T0}, 4096")
            for k in range(8):
                e(f"s_waitcnt lgkmcnt({7-k})")
                so = S_T0 if k < 4 else S_T1
                e(f"buffer_store_dwordx4 v[{128+4*k}:{131+4*k}], v0, s[{S_O}:{S_O+3}], s{so} offen offset:{(k%4)*1024}{stf}")
        if self.stamps:
            self.stamp()
            e("s_waitcnt vmcnt(0)")
            self.stamp()
            e("s_memrealtime s[100:101]")
            e("s_waitcnt lgkmcnt(0)")
            if 'dbgst' in self.exp:
                e("s_cmp_lg_u32 s2, 100")
                e("s_cbranch_scc1 L_done")
                e(f"s_cmp_lg_u32 s{S_W}, 0")
                e("s_cbranch_scc1 L_done")
                e("s_mov_b32 s8, s18"); e("s_mov_b32 s9, s19"); e("s_mov_b32 s10, 256"); e("s_mov_b32 s11, 0x00020000")
                e("v_mov_b32 v4, 0")
                e(f"v_cmp_eq_u32 vcc, 0, v{ln}")
                e("s_and_saveexec_b64 s[12:13], vcc")
                for k in range(1, self.nstamp):
                    e(f"s_sub_u32 s3, s{72+2*k}, s72")
                    e("v_mov_b32 v6, s3")
                    e(f"buffer_store_dword v6, v4, s[8:11], 0 offen offset:{4*k}")
                e("s_sub_u32 s3, s100, s98")
                e("v_mov_b32 v6, s3")
                e(f"buffer_store_dword v6, v4, s[8:11], 0 offen offset:0")
            else:
                e("s_mov_b32 s8, s18"); e("s_mov_b32 s9, s19"); e("s_mov_b32 s10, 0x1000000"); e("s_mov_b32 s11, 0x00020000")
                e("s_lshl_b32 s3, s2, 2")
                e(f"s_add_u32 s3, s3, s{S_W}")
                e("s_lshl_b32 s3, s3, 7")
                e("v_mov_b32 v4, s3")
                e(f"v_cmp_eq_u32 vcc, 0, v{ln}")
                e("s_and_saveexec_b64 s[12:13], vcc")
                for k in range(self.nstamp):
                    e(f"s_sub_u32 s3, s{72+2*k}, s72")
                    e("v_mov_b32 v6, s3")
                    e(f"buffer_store_dword v6, v4, s[8:11], 0 offen offset:{4*k}")
                e("v_mov_b32 v6, s100")
                e(f"buffer_store_dword v6, v4, s[8:11], 0 offen offset:{4*16}")
                e("v_mov_b32 v6, s98")
                e(f"buffer_store_dword v6, v4, s[8:11], 0 offen offset:{4*17}")
        self.label("L_done")
        e("s_endpgm")
        for u, X, src in self.stubs:
            self.label(f"L_stub{u}")
            if src is not None:
                S = self.blk(X)["S"]
                for i in range(16):
                    e(f"v_mov_b32 v{S+i}, v{src+i}")
            e(f"s_call_b64 s[{S_RET}:{S_RET+1}], L_slow{X}")
            e(f"s_branch L_back{u}")
        self.slow_path("A")
        self.slow_path("B")
        L.append('.section .rodata,"a"')
        L.append(".p2align 6")
        L.append(f".amdhsa_kernel {KNAME}")
        L.append("  .amdhsa_next_free_vgpr 512")
        L.append("  .amdhsa_next_free_sgpr 102")
        L.append("  .amdhsa_accum_offset 256")
        L.append("  .amdhsa_group_segment_fixed_size 0")
        L.append("  .amdhsa_kernarg_size 72")
        L.append("  .amdhsa_user_sgpr_count 2")
        L.append("  .amdhsa_user_sgpr_kernarg_segment_ptr 1")
        L.append("  .amdhsa_system_sgpr_workgroup_id_x 1")
        L.append(".end_amdhsa_kernel")
        return "\n".join(L) + "\n"


if __name__ == "__main__":
    ap = argparse.ArgumentParser()
    ap.add_argument("-o", default="k2.s")
    ap.add_argument("--no-nt", action="store_true")
    ap.add_argument("--stamps", action="store_true")
    ap.add_argument("--no-pf", action="store_true")
    ap.add_argument("--exp", default="")
    ap.add_argument("--cfg", default="")
    a = ap.parse_args()
    cfg = eval("dict(" + a.cfg + ")") if a.cfg else None
    g = Gen(nt=not a.no_nt, stamps=a.stamps, code_pf=not a.no_pf, exp=a.exp, cfg=cfg)
    open(a.o, "w").write(g.build())
```

```python
import sys, struct, argparse

KNAME = "standalone__tree_speculative_verify_tree_attention_over_candidate_token_tree__sampling_kernel"
HEADER = open("standalone__tree_speculative_verify_tree_attention_over_candidate_token_tree__sampling.s.ref").read().split("; Override launch")[0]


def f32bits(x):
    return struct.unpack("<I", struct.pack("<f", x))[0]


V_OA = 64
V_SA, V_SB = 128, 144
V_CA, V_CB = 160, 168
V_PA, V_PB = 176, 184
V_EA, V_EB = 192, 196
V_LA, V_LB = 200, 208
V_MA, V_MB = 216, 218
V_XA, V_XB = 220, 221
V_LANE = 222
V_KA = 224
V_VA = 228
V_DK = 236
V_DV = 240
V_ONE = 244
V_SL = 0
V_ST = 32
V_IT = 48
VTA = 248
A_OB = 0
A_QA, A_QB = 64, 96
A_KF = 128
A_VF = 160
A_VT = 192
A_KT = 224
S_K, S_V, S_Q, S_KT, S_VT, S_M, S_O = 20, 24, 28, 32, 36, 40, 44
S_W, S_I, S_J = 48, 49, 50
S_KOFF, S_VOFF = 51, 52
S_WB = 53
S_LOOP = 54
S_THR = 55
S_T4 = 59
S_RET = 60
S_T0, S_T1, S_T2, S_T3 = 62, 63, 64, 65
S_BH, S_QH = 66, 67
S_C = 68
S_PC = 70

LDS_V = 65536
LDS_KT = 131072
LDS_VT = 139264
LDS_ML = 147456
BIAS = 10.0
SCALE = (128 ** -0.5) * 1.4426950408889634
NG = 68
G_PVA, G_QKB, G_PVB = 16, 34, 50


def spread(ops, g0, g1):
    n = len(ops)
    k = g1 - g0 + 1
    return [(g0 + (i * k) // n, op) for i, op in enumerate(ops)]


class Gen:
    def __init__(self, nt=True, code_pf=True, stamps=False, exp="", cfg=None):
        self.L = []
        self.nt = " nt" if nt else ""
        self.code_pf = code_pf
        self.uid = 0
        self.stubs = []
        self.stamps = stamps
        self.nstamp = 0
        self.exp = exp
        self.cfg = dict(sma=22, smb=56, bar=41, stf=" nt", ahead=0, dma_lo=1, dma_hi=39, onefirst=0)
        if cfg:
            self.cfg.update(cfg)

    def e(self, s):
        self.L.append("  " + s)

    def label(self, s):
        self.L.append(s + ":")

    def c(self, s):
        self.L.append("  ; " + s)

    def stamp(self):
        if self.stamps:
            k = self.nstamp
            self.nstamp += 1
            assert k < 13
            self.e(f"s_memtime s[{72+2*k}:{73+2*k}]")

    def blk(self, X):
        if X == "A":
            return dict(S=V_SA, C=V_CA, P=V_PA, E=V_EA, L=V_LA, M=V_MA, Q=A_QA, IT=V_IT, X=V_XA)
        return dict(S=V_SB, C=V_CB, P=V_PB, E=V_EB, L=V_LB, M=V_MB, Q=A_QB, IT=V_IT + 8, X=V_XB)

    def qk_mfmas(self, X, kf=A_KF, cin=None, dst=None):
        r = self.blk(X)
        S = r["S"] if dst is None else dst
        Q = r["Q"]
        out = []
        for qb in range(2):
            for kt in range(2):
                s = S + 8 * qb + 4 * kt
                for ks in range(4):
                    if ks == 0 and cin != "self":
                        c = f"v[{r['C']+4*qb}:{r['C']+4*qb+3}]" if cin is None else cin
                    else:
                        c = f"v[{s}:{s+3}]"
                    k = kf + 4 * (4 * kt + ks)
                    q = Q + 4 * (4 * qb + ks)
                    out.append(f"v_mfma_f32_16x16x32_bf16 v[{s}:{s+3}], a[{k}:{k+3}], a[{q}:{q+3}], {c}")
        return out

    def pv_mfmas(self, X, vf=A_VF):
        r = self.blk(X)
        P, Lr = r["P"], r["L"]
        out = []
        for qb in range(2):
            grp = []
            for dt in range(8):
                f = vf + 4 * dt
                ob = 32 * qb + 4 * dt
                if X == "A":
                    o = f"v[{V_OA+ob}:{V_OA+ob+3}]"
                else:
                    o = f"a[{A_OB+ob}:{A_OB+ob+3}]"
                grp.append(f"v_mfma_f32_16x16x32_bf16 {o}, a[{f}:{f+3}], v[{P+4*qb}:{P+4*qb+3}], {o}")
            l = f"v[{Lr+4*qb}:{Lr+4*qb+3}]"
            grp.append(f"v_mfma_f32_16x16x32_bf16 {l}, v[{V_ONE}:{V_ONE+3}], v[{P+4*qb}:{P+4*qb+3}], {l}")
            out += grp
        return out

    def sm_stream(self, X, src=None):
        r = self.blk(X)
        S, P, E, XX = r["S"], r["P"], r["E"], r["X"]
        if src is not None:
            S = src
        out = []
        for e in range(16):
            out.append((2 * e, f"v_exp_f32 v{E+e%4}, v{S+e}"))
            if e % 2 == 1:
                k = e // 2
                out.append((2 * e + 1, f"v_cvt_pk_bf16_f32 v{P+k}, v{E+(e-1)%4}, v{E+e%4}"))
                if k == 3:
                    out.append((2 * e - 1, f"v_or3_b32 v{XX}, v{P}, v{P+1}, v{P+2}"))
                if k == 5:
                    out.append((2 * e - 1, f"v_or3_b32 v{XX}, v{XX}, v{P+3}, v{P+4}"))
                if k == 7:
                    out.append((2 * e - 1, f"v_or3_b32 v{XX}, v{XX}, v{P+5}, v{P+6}"))
        out.append((33, f"v_or_b32 v{XX}, v{XX}, v{P+7}"))
        out.append((33, f"v_and_b32 v{XX}, s{S_THR}, v{XX}"))
        out.append((35, f"v_cmp_ne_u32 vcc, 0, v{XX}"))
        self.uid += 1
        u = self.uid
        self.stubs.append((u, X, src))
        out.append((37, f"s_cbranch_vccnz L_stub{u}\nL_back{u}:"))
        out.sort(key=lambda x: x[0])
        return out

    def rowmax(self, S, t, dst, floor0=False):
        ops = [
            f"v_max3_f32 v{t}, v{S}, v{S+1}, v{S+2}",
            f"v_max3_f32 v{t+1}, v{S+3}, v{S+4}, v{S+5}",
            f"v_max3_f32 v{t}, v{t}, v{S+6}, v{S+7}",
            f"v_max_f32 v{t}, v{t}, v{t+1}",
            f"v_mov_b32 v{t+1}, v{t}",
            "s_nop 1",
            f"v_permlane16_swap_b32 v{t}, v{t+1}",
            "s_nop 1",
            f"v_max_f32 v{t}, v{t}, v{t+1}",
            f"v_mov_b32 v{t+1}, v{t}",
            "s_nop 1",
            f"v_permlane32_swap_b32 v{t}, v{t+1}",
            "s_nop 1",
        ]
        ops.append(f"v_max_f32 v{t}, v{t}, v{t+1}")
        ops.append(f"v_add_f32 v{dst}, {f32bits(BIAS):#x}, v{t}")
        if floor0:
            ops.append(f"v_max_f32 v{dst}, 0, v{dst}")
        return ops

    def ism_part1(self, X):
        r = self.blk(X)
        S, M, t = r["S"], r["M"], r["IT"]
        a = self.rowmax(S, t, M)
        b = self.rowmax(S + 8, t + 3, M + 1)
        ops = []
        for x, y in zip(a, b):
            if x.startswith("s_nop"):
                ops.append("s_nop 0")
            else:
                ops += [x, y]
        ops.append(f"v_sub_f32 v{t+6}, 0, v{M}")
        ops.append(f"v_sub_f32 v{t+7}, 0, v{M+1}")
        return ops

    def ism_part2(self, X):
        r = self.blk(X)
        S, C, P, E, M, t = r["S"], r["C"], r["P"], r["E"], r["M"], r["IT"]
        ops = []
        for i in range(16):
            ops.append(f"v_sub_f32 v{S+i}, v{S+i}, v{M+i//8}")
        ex = []
        for e in range(17):
            if e < 16:
                ex.append(f"v_exp_f32 v{E+e%4}, v{S+e}")
            if e < 8:
                ex.append(f"v_mov_b32 v{C+e}, v{t+6+e//4}")
            elif e == 16:
                ex.append("s_nop 0")
            p = e - 1
            if p >= 0 and p % 2 == 1:
                ex.append(f"v_cvt_pk_bf16_f32 v{P+p//2}, v{E+(p-1)%4}, v{E+p%4}")
        return ops + ex

    def emit_line(self, s):
        if "\n" in s:
            for x in s.split("\n"):
                self.emit_line(x)
            return
        if s.endswith(":"):
            self.label(s[:-1])
        else:
            self.e(s)

    def k_read(self, idx, slot, dst=A_KF, addr=V_KA, off=None):
        kt, ks = idx // 4, idx % 4
        o = (slot * 16384 if off is None else off) + kt * 4096
        return f"ds_read_b128 a[{dst+4*idx}:{dst+4*idx+3}], v{addr+ks} offset:{o}"

    def v_reads(self, dt, slot, dst=A_VF, addr=V_VA, off=None):
        o = slot * 16384 if off is None else off
        f = dst + 4 * dt
        return [f"ds_read_b64_tr_b16 a[{f}:{f+1}], v{addr+dt} offset:{o}",
                f"ds_read_b64_tr_b16 a[{f+2}:{f+3}], v{addr+dt} offset:{o+4096}"]

    def dma_k(self, q, soff=S_KOFF, srd=S_K, v=None):
        vv = V_DK + q if v is None else v
        return f"buffer_load_dwordx4 v{vv}, s[{srd}:{srd+3}], s{soff} offen offset:{q*1024}{self.nt} lds"

    def dma_v(self, q, soff=S_VOFF, srd=S_V, v=None):
        vv = V_DV + (q & 1) if v is None else v
        return f"buffer_load_dwordx4 v{vv}, s[{srd}:{srd+3}], s{soff} offen offset:{q*1024}{self.nt} lds"

    def dma_k_stage(self, slot):
        return ([f"s_add_u32 m0, s{S_WB}, {slot*16384}", "s_nop 0"] + [self.dma_k(q) for q in range(4)]
                + [f"s_add_u32 s{S_KOFF}, s{S_KOFF}, 16384"])

    def dma_v_stage(self, slot):
        return ([f"s_add_u32 m0, s{S_WB}, {LDS_V+slot*16384}", "s_nop 0"] + [self.dma_v(q) for q in range(4)]
                + [f"s_add_u32 s{S_VOFF}, s{S_VOFF}, 16384"])

    def emit_all(self, lines):
        for s in lines:
            self.emit_line(s)

    def emit_sched(self, mfmas, gaps, pre=None):
        pre = pre or {}
        n = len(mfmas)
        for k in range(n):
            for s in pre.get(k, []):
                self.emit_line(s)
            self.e(mfmas[k])
            for s in gaps.get(k, []):
                self.emit_line(s)
        for k in sorted(g for g in gaps if g >= n):
            for s in gaps[k]:
                self.emit_line(s)

    def plan(self):
        if hasattr(self, "_plan"):
            return self._plan
        cfg = self.cfg
        load = {}
        def add(g, w):
            load[g % NG] = load.get(g % NG, 0) + w
        uid, stubs = self.uid, list(self.stubs)
        for X, g0 in (("A", cfg["sma"]), ("B", cfg["smb"])):
            for g, s in self.sm_stream(X):
                add(g0 + g, 2 if s.startswith("v_exp") else 1)
        self.uid, self.stubs = uid, stubs
        add(cfg["bar"], 2)
        def place(lo, hi, w):
            best = min(range(lo, hi + 1), key=lambda g: (load.get(g % NG, 0) + (0 if g % 2 else 0.5), g))
            add(best, w)
            return best
        bar = cfg["bar"]
        if "dma" in cfg:
            dma = cfg["dma"]
            for g in dma: add(g, 2)
        else:
            lo, hi = cfg["dma_lo"], cfg["dma_hi"]
            dma = []
            for q in range(8):
                a = lo + (hi - lo + 1) * q // 8
                b = lo + (hi - lo + 1) * (q + 1) // 8 - 1
                dma.append(place(a, b, 2))
        kr, p = [], 0
        for i in range(8):
            lo = max(bar + 1, 42 + i, p)
            p = place(lo, min(lo + 3, 62 + i), 1)
            kr.append(p)
        vr, p = [], 0
        for k in range(16):
            lo = max(bar + 1, 59 + k // 2, p)
            p = place(lo, min(lo + 2, 77 + k // 2), 1)
            vr.append(p)
        self._plan = dict(dma=dma, kread=kr, vread=vr)
        self.c(f"plan: {self._plan}")
        self.c("load: " + " ".join(str(load.get(g, 0)) for g in range(NG)))
        return self._plan

    def iteration(self, m, carry, dma=True, vm=16, pva_vf=A_VF, kread=True, loop_end=None, bar=None, first=False):
        cfg = self.cfg
        pl = self.plan()
        mm = m % 4
        self.c(f"---- iteration {m} (mod 4 = {mm})")
        items = []

        def put(g, s, pri=1):
            if 'novalu' in self.exp and s.startswith('v_'):
                return
            if 'nods' in self.exp and s.startswith('ds_'):
                return
            items.append((g, pri, len(items), s))

        mf = self.qk_mfmas("A") + self.pv_mfmas("A", pva_vf) + self.qk_mfmas("B") + self.pv_mfmas("B")
        assert len(mf) == NG
        for g, s in carry:
            put(g, s)
        for g, s in self.sm_stream("A"):
            put(cfg["sma"] + g, s)
        for g, s in self.sm_stream("B"):
            put(cfg["smb"] + g, s)
        bg = cfg["bar"] if bar is None else bar
        if dma and 'nodma' not in self.exp:
            gk, gv = pl["dma"][:4], pl["dma"][4:]
            ah = 1 if cfg.get("ahead") else 0
            if ah:
                assert gk[0] - 1 >= bg
            else:
                assert gv[3] <= bg and gk[0] >= 1
            md = (mm + ah) % 4
            put(gk[0] - 1, f"s_add_u32 m0, s{S_WB}, {md*16384}", 2)
            for q, g in enumerate(gk):
                put(g, self.dma_k(q), 2)
            assert gv[0] - 1 >= gk[3] and gv[3] < NG
            put(gv[0] - 1, f"s_add_u32 m0, s{S_WB}, {LDS_V+((md+3)%4)*16384}", 3)
            put(gv[0] - 1, f"s_add_u32 s{S_KOFF}, s{S_KOFF}, 16384", 3)
            for q, g in enumerate(gv):
                put(g, self.dma_v(q), 2)
            put(gv[3], f"s_add_u32 s{S_VOFF}, s{S_VOFF}, 16384", 3)
        pb = 0 if cfg.get("ahead") else 4
        put(bg, f"s_waitcnt vmcnt({vm})", pb)
        if 'nobar' not in self.exp:
            put(bg, "s_barrier", pb)
        if kread:
            for i in range(8):
                assert pl["kread"][i] >= 42 + i and pl["kread"][i] > bg
                put(pl["kread"][i], self.k_read(i, (mm + 2) % 4))
        vr = []
        for dt in range(8):
            vr += self.v_reads(dt, (mm + 1) % 4)
        for k, s in enumerate(vr):
            g = pl["vread"][k]
            assert g >= 59 + k // 2 and g > bg
            put(g, s)
        if loop_end:
            for s in loop_end:
                put(NG - 1, s, 9)
        items.sort()
        gaps = {}
        nxt = []
        for g, pri, _, s in items:
            if g >= NG:
                nxt.append((g - NG, s))
            else:
                gaps.setdefault(g, []).append(s)
        seq = sorted([(pl["kread"][i], 0, i, "K") for i in range(8)] +
                     [(pl["vread"][k], 1, k, "V") for k in range(16)])
        pre = {}

        def wait_for(pos, pred):
            issued = [x for x in seq if x[0] < NG + pos]
            last = max(i for i, x in enumerate(issued) if pred(x))
            assert all(x in issued for x in seq if pred(x))
            return min(len(issued) - 1 - last, 15)
        if not first:
            pre[0] = [f"s_waitcnt lgkmcnt({wait_for(0, lambda x: x[3]=='K')})"]
            pre[16] = [f"s_waitcnt lgkmcnt({wait_for(16, lambda x: x[3]=='V' and x[2] < 8)})"]
            pre[20] = [f"s_waitcnt lgkmcnt({wait_for(20, lambda x: x[3]=='V')})"]
        self.emit_sched(mf, gaps, pre)
        return nxt

    def slow_path(self, X):
        r = self.blk(X)
        S, C, P, Lr, M = r["S"], r["C"], r["P"], r["L"], r["M"]
        t = V_SL
        self.label(f"L_slow{X}")
        e = self.e
        for qb in range(2):
            d = t + 3
            f = t + 4
            self.emit_all(self.rowmax(S + 8 * qb, t, d, floor0=True))
            e(f"v_add_f32 v{M+qb}, v{M+qb}, v{d}")
            e(f"v_exp_f32 v{f}, -v{d}")
            e(f"v_sub_f32 v{t+5}, 0, v{M+qb}")
            for i in range(4):
                e(f"v_mov_b32 v{C+4*qb+i}, v{t+5}")
            e(f"v_mul_f32 v{Lr+4*qb}, v{Lr+4*qb}, v{f}")
            if X == "A":
                for i in range(32):
                    o = V_OA + 32 * qb + i
                    e(f"v_mul_f32 v{o}, v{o}, v{f}")
            else:
                for i in range(0, 32, 4):
                    for k in range(4):
                        e(f"v_accvgpr_read_b32 v{t+8+k}, a{A_OB+32*qb+i+k}")
                    for k in range(4):
                        e(f"v_mul_f32 v{t+8+k}, v{t+8+k}, v{f}")
                    for k in range(4):
                        e(f"v_accvgpr_write_b32 a{A_OB+32*qb+i+k}, v{t+8+k}")
            for i in range(0, 8, 4):
                for k in range(4):
                    e(f"v_sub_f32 v{t+8+k}, v{S+8*qb+i+k}, v{d}")
                for k in range(4):
                    e(f"v_exp_f32 v{t+8+k}, v{t+8+k}")
                e("s_nop 0")
                e(f"v_cvt_pk_bf16_f32 v{P+4*qb+i//2}, v{t+8}, v{t+9}")
                e(f"v_cvt_pk_bf16_f32 v{P+4*qb+i//2+1}, v{t+10}, v{t+11}")
        e("s_nop 1")
        e(f"s_setpc_b64 s[{S_RET}:{S_RET+1}]")

    def srd(self, d, lo, hi, off, size):
        e = self.e
        e(f"s_add_u32 s{d}, s{lo}, s{off}")
        e(f"s_addc_u32 s{d+1}, s{hi}, 0")
        e(f"s_mov_b32 s{d+2}, {size}")
        e(f"s_mov_b32 s{d+3}, 0x00020000")

    def build(self):
        e = self.e
        L = self.L
        cfg = self.cfg
        L.append(HEADER.rstrip())
        L.append("; @launch grid=(256,1,1) block=(256,1,1) lds=163840")
        L.append('.amdgcn_target "amdgcn-amd-amdhsa--gfx950"')
        L.append(".text")
        L.append(f".globl {KNAME}")
        L.append(".p2align 8")
        L.append(f".type {KNAME},@function")
        self.label(KNAME)
        self.stamp()
        if self.stamps:
            e("s_memrealtime s[98:99]")
        e("s_cmp_ge_u32 s2, 256")
        e("s_cbranch_scc1 L_done")
        e("s_load_dwordx8 s[4:11], s[0:1], 0")
        e("s_load_dwordx4 s[12:15], s[0:1], 32")
        e("s_load_dwordx2 s[16:17], s[0:1], 48")
        if self.stamps:
            e(f"s_load_dwordx2 s[18:19], s[0:1], {56 if 'dbgst' in self.exp else 64}")
        e(f"s_getpc_b64 s[{S_PC}:{S_PC+1}]")
        self.label("L_pcbase")
        e(f"v_lshrrev_b32 v1, 6, v0")
        e(f"v_and_b32 v{V_LANE}, 63, v0")
        ln = V_LANE
        if self.code_pf:
            e(f"v_lshlrev_b32 v13, 4, v0")
            e("s_cmp_ge_u32 s2, 32")
            e("s_cbranch_scc1 L_nopf")
            e("s_mov_b32 s3, L_codeend-L_pcbase-16")
            for k in range(5):
                e(f"v_min_u32 v12, s3, v13")
                e(f"global_load_dwordx4 v[24:27], v12, s[{S_PC}:{S_PC+1}]")
                e(f"v_add_u32 v13, 0x1000, v13")
            self.label("L_nopf")
        e("s_and_b32 s3, s2, 7")
        e(f"v_readfirstlane_b32 s{S_W}, v1")
        e(f"s_lshr_b32 s{S_BH}, s2, 4")
        e(f"s_lshl_b32 s{S_BH}, s{S_BH}, 3")
        e(f"s_add_u32 s{S_BH}, s{S_BH}, s3")
        if 'samebh' in self.exp:
            e(f"s_and_b32 s{S_BH}, s{S_BH}, 7")
        e(f"s_lshr_b32 s{S_QH}, s2, 3")
        e(f"s_and_b32 s{S_QH}, s{S_QH}, 1")
        e(f"s_lshr_b32 s{S_I}, s{S_W}, 1")
        e(f"s_and_b32 s{S_J}, s{S_W}, 1")
        e(f"s_lshl_b32 s{S_WB}, s{S_W}, 12")
        e(f"v_lshrrev_b32 v1, 4, v{ln}")
        e(f"v_and_b32 v2, 15, v{ln}")
        e(f"v_lshlrev_b32 v3, 8, v1")
        e(f"v_add_u32 v3, s{S_WB}, v3")
        for q in range(4):
            e(f"v_add_u32 v4, {4*q}, v1")
            e(f"v_xor_b32 v4, v4, v2")
            e(f"v_lshl_add_u32 v{V_DK+q}, v4, 4, v3")
        for q in range(2):
            e(f"v_add_u32 v4, {4*q}, v1")
            e(f"v_lshlrev_b32 v4, 1, v4")
            e(f"v_xor_b32 v4, v4, v2")
            e(f"v_lshl_add_u32 v{V_DV+q}, v4, 4, v3")
        e(f"v_lshlrev_b32 v7, 6, v2")
        e(f"v_lshl_add_u32 v7, v1, 3, v7")
        e(f"v_lshlrev_b32 v14, 4, v{ln}")
        e(f"s_lshl_b32 s{S_T0}, s{S_BH}, 16")
        e(f"s_lshl_b32 s{S_T1}, s{S_QH}, 15")
        e(f"s_add_u32 s{S_T0}, s{S_T0}, s{S_T1}")
        e(f"s_lshl_b32 s{S_T1}, s{S_BH}, 19")
        e(f"s_lshr_b32 s{S_T2}, s{S_BH}, 2")
        e(f"s_lshl_b32 s{S_T2}, s{S_T2}, 11")
        e(f"s_lshl_b32 s{S_T3}, s{S_W}, 13")
        e(f"s_mov_b32 s{S_KOFF}, 0")
        e(f"s_mov_b32 s{S_VOFF}, 0")
        e("s_waitcnt lgkmcnt(0)")
        self.stamp()
        self.srd(S_Q, 4, 5, S_T0, 32768)
        for k in range(4):
            e(f"buffer_load_dwordx4 v[{128+4*k}:{131+4*k}], v14, s[{S_Q}:{S_Q+3}], s{S_T3} offen offset:{k*1024}{self.nt}")
        e(f"s_add_u32 s{S_T3}, s{S_T3}, 4096")
        self.srd(S_K, 6, 7, S_T1, 524288)
        for k in range(4):
            e(f"buffer_load_dwordx4 v[{144+4*k}:{147+4*k}], v14, s[{S_Q}:{S_Q+3}], s{S_T3} offen offset:{k*1024}{self.nt}")
        self.emit_all(self.dma_k_stage(0))
        self.srd(S_M, 14, 15, S_T2, 2048)
        for qb in range(2):
            for kt in range(2):
                g = 2 * qb + kt
                e(f"buffer_load_dwordx2 v[{16+2*g}:{17+2*g}], v7, s[{S_M}:{S_M+3}], 0 offen offset:{qb*1024+kt*32}")
        self.srd(S_V, 8, 9, S_T1, 524288)
        e(f"s_lshl_b32 s{S_T1}, s{S_BH}, 13")
        self.srd(S_KT, 10, 11, S_T1, 8192)
        self.srd(S_VT, 12, 13, S_T1, 8192)
        self.srd(S_O, 16, 17, S_T0, 32768)
        e(f"s_lshl_b32 s{S_T4}, s{S_W}, 11")
        e(f"s_lshl_b32 s{S_T2}, s{S_J}, 3")
        e(f"v_lshlrev_b32 v8, 8, v1")
        e(f"v_add_u32 v8, s{S_T4}, v8")
        for q in range(2):
            e(f"v_add_u32 v9, s{S_T2}, v1")
            e(f"v_add_u32 v9, {4*q}, v9")
            e(f"v_xor_b32 v9, v9, v2")
            e(f"v_lshl_add_u32 v{(15,13)[q]}, v9, 4, v8")
            e(f"v_subrev_u32 v{(12,11)[q]}, s{S_T4}, v{V_DV+q}")
        e(f"s_mov_b32 s{S_T3}, 0")
        dV0 = self.dma_v_stage(0)
        dKT = [f"s_add_u32 m0, s{S_T4}, {LDS_KT}", "s_nop 0"] + [self.dma_k(q, soff=S_T3, srd=S_KT, v=(15, 13)[q]) for q in range(2)]
        dK1 = self.dma_k_stage(1)
        dVT = [f"s_add_u32 m0, s{S_T4}, {LDS_VT}", "s_nop 0"] + [self.dma_v(q, soff=S_T3, srd=S_VT, v=(12, 11)[q]) for q in range(2)]
        dV1 = self.dma_v_stage(1)
        e(f"s_lshl_b32 s{S_T2}, s{S_J}, 13")
        e(f"v_lshlrev_b32 v8, 8, v2")
        e(f"v_add_u32 v8, s{S_T2}, v8")
        for ks in range(4):
            e(f"v_add_u32 v10, {4*ks}, v1")
            e(f"v_xor_b32 v10, v10, v2")
            e(f"v_lshl_add_u32 v{V_KA+ks}, v10, 4, v8")
        e(f"v_lshrrev_b32 v9, 2, v2")
        e(f"v_lshl_add_u32 v10, v1, 2, v9")
        e(f"v_and_b32 v5, 7, v10")
        e(f"v_lshlrev_b32 v10, 8, v10")
        e(f"s_add_u32 s{S_T2}, s{S_T2}, {LDS_V}")
        e(f"v_add_u32 v10, s{S_T2}, v10")
        e(f"v_and_b32 v6, 3, v2")
        e(f"v_lshl_add_u32 v10, v6, 3, v10")
        for dt in range(8):
            e(f"v_xor_b32 v6, {dt}, v5")
            e(f"v_lshl_add_u32 v{V_VA+dt}, v6, 5, v10")
        for i in range(64):
            e(f"v_mov_b32 v{V_OA+i}, 0")
        for i in range(64):
            e(f"v_accvgpr_write_b32 a{A_OB+i}, 0")
        e(f"s_mov_b32 s{S_THR}, 0x40004000")
        for i in range(16):
            e(f"v_mov_b32 v{V_LA+i}, 0")
        for i in range(4):
            e(f"v_mov_b32 v{V_ONE+i}, 0x3f803f80")
        e(f"s_mov_b32 s{S_C}, {f32bits(SCALE):#x}")
        e(f"s_mov_b32 s{S_C+1}, {f32bits(SCALE):#x}")
        e(f"s_lshl_b32 s{S_T1}, s{S_I}, 16")
        e(f"s_add_u32 s{S_T1}, s{S_T1}, 49152")
        e(f"s_lshl_b32 s{S_T2}, s{S_J}, 13")
        e(f"s_add_u32 s{S_T2}, s{S_T2}, s{S_T1}")
        e(f"s_sub_u32 s{S_T2}, s{S_T2}, s{S_WB}")
        for q in range(4):
            e(f"v_add_u32 v{4+q}, s{S_T2}, v{V_DK+q}")
        e(f"s_lshl_b32 s{S_T2}, s{S_J}, 14")
        e(f"s_sub_u32 s{S_T2}, s{S_T1}, s{S_T2}")
        e(f"s_add_u32 s{S_T2}, s{S_T2}, 8192")
        for ks in range(4):
            e(f"v_add_u32 v{48+ks}, s{S_T1}, v{V_KA+ks}")
            e(f"v_add_u32 v{52+ks}, s{S_T2}, v{V_KA+ks}")
        e(f"s_lshl_b32 s{S_T2}, s{S_J}, 13")
        e(f"s_sub_u32 s{S_T1}, {LDS_KT}, s{S_T2}")
        e(f"s_sub_u32 s{S_T2}, {LDS_VT-LDS_V}, s{S_T2}")
        for ks in range(4):
            e(f"v_add_u32 v{ks}, s{S_T1}, v{V_KA+ks}")
        for dt in range(8):
            e(f"v_add_u32 v{VTA+dt}, s{S_T2}, v{V_VA+dt}")
        order = cfg.get("order", "mid")
        pend = [dV0, dKT, dK1, dVT, dV1]
        nv = 8
        nearly = {"late": 0, "mid": 3, "early": 5}[order]
        for lines in pend[:nearly]:
            self.emit_all(lines)
            nv += sum(1 for x in lines if x.startswith("buffer_load"))
        pend = pend[nearly:]
        self.stamp()
        for k in range(8):
            e(f"s_waitcnt vmcnt({nv + 7 - k})")
            if k == 0:
                self.stamp()
            if k % 2 == 1 and pend:
                lines = pend.pop(0)
                self.emit_all(lines)
                nv += sum(1 for x in lines if x.startswith("buffer_load"))
            for x in range(4):
                src = 128 + 4 * k + x
                t = 176 + 2 * x
                e(f"v_lshlrev_b32 v{t}, 16, v{src}")
                e(f"v_and_b32 v{t+1}, 0xffff0000, v{src}")
            for x in range(4):
                t = 176 + 2 * x
                e(f"v_pk_mul_f32 v[{t}:{t+1}], v[{t}:{t+1}], s[{S_C}:{S_C+1}]")
            o = 184 + 4 * (k % 2)
            for x in range(4):
                t = 176 + 2 * x
                e(f"v_cvt_pk_bf16_f32 v{o+x}, v{t}, v{t+1}")
            e(f"ds_write_b128 v{4+k%4}, v[{o}:{o+3}] offset:{(k>>2)*4096+(k&3)*1024}")
        for lines in pend:
            self.emit_all(lines)
        e(f"s_waitcnt vmcnt(16) lgkmcnt(0)")
        e("s_barrier")
        self.stamp()
        for ks in range(4):
            e(f"ds_read_b128 a[{A_QA+4*ks}:{A_QA+4*ks+3}], v{48+ks}")
            e(self.k_read(ks, 0))
        for ks in range(4):
            e(self.k_read(4 + ks, 0))
        for ks in range(4):
            e(f"ds_read_b128 a[{A_QA+16+4*ks}:{A_QA+16+4*ks+3}], v{48+ks} offset:4096")
        for qb in range(2):
            for ks in range(4):
                e(f"ds_read_b128 a[{A_QB+16*qb+4*ks}:{A_QB+16*qb+4*ks+3}], v{52+ks} offset:{qb*4096}")
        e(f"s_mov_b32 s{S_T0}, {f32bits(-1e9*1.4426950408889634):#x}")
        bias1 = []
        for g in range(4):
            for k in range(2):
                src = 16 + 2 * g + k
                d0 = V_ST + 4 * g + 2 * k
                bias1.append(f"v_lshlrev_b32 v{d0}, 16, v{src}")
                bias1.append(f"v_and_b32 v{d0+1}, 0xffff0000, v{src}")
        for i in range(16):
            bias1.append(f"v_sub_f32 v{V_ST+i}, 1.0, v{V_ST+i}")
        self.emit_all(bias1[:16])
        mf = self.qk_mfmas("A", cin="0") + self.qk_mfmas("B", cin="0")
        pre = {}
        for k in range(4):
            pre[k] = [f"s_waitcnt lgkmcnt({min(15, 24-2*(k+1))})"]
        for k in range(4):
            pre[4 + k] = [f"s_waitcnt lgkmcnt({min(15, 24-8-(k+1))})"]
        for k in range(4):
            pre[8 + k] = [f"s_waitcnt lgkmcnt({24-12-(k+1)})"]
        pre[16] = ["s_waitcnt lgkmcnt(4)"]
        pre[24] = ["s_waitcnt lgkmcnt(0)"]
        gaps = {}

        def put(g, s):
            gaps.setdefault(g, []).append(s)
        for g, s in spread(bias1[16:], 0, 7):
            put(g, s)
        for g, s in spread(self.dma_k_stage(2), 8, 17):
            put(g, s)
        tA = self.blk("A")["IT"]
        bias2 = [f"v_fma_f32 v{V_ST+i}, v{V_ST+i}, s{S_T0}, v{tA+6+i//8}" for i in range(16)]
        for g, s in spread(self.ism_part1("A") + bias2, 19, 31):
            put(g, s)
        self.emit_sched(mf, gaps, pre)
        e(f"s_waitcnt vmcnt(8)")
        e("s_barrier")
        self.stamp()
        for i in range(8):
            e(self.k_read(i, 0, dst=A_KT, addr=0, off=0))
        for dt in range(8):
            self.emit_all(self.v_reads(dt, 0))
        p2a = self.ism_part2("A")
        self.emit_all(p2a[:16])
        mf = self.qk_mfmas("A", kf=A_KT, cin="self", dst=V_ST) + self.pv_mfmas("A")
        pre = {0: ["s_waitcnt lgkmcnt(15)"], 16: ["s_waitcnt lgkmcnt(8)", "s_nop 1"]}
        gaps = {}
        rd = [self.k_read(i, 1) for i in range(8)]
        for g, s in spread(p2a[16:], 0, 15):
            put(g, s)
        for g, s in spread(rd, 0, 15):
            put(g, s)
        dm = self.dma_v_stage(2) + self.dma_k_stage(3)
        if cfg.get("ahead"):
            dm += self.dma_k_stage(0) + self.dma_v_stage(3)
        rdv = []
        for dt in range(8):
            rdv += self.v_reads(dt, 0, dst=A_VT, addr=VTA, off=0)
        for g, s in spread(self.ism_part1("B"), 16, 23):
            put(g, s)
        smt = self.sm_stream("A", src=V_ST)
        h0 = [s for g, s in smt if g < 17]
        h1 = [s for g, s in smt if g >= 17]
        h0n = []
        for k, s in enumerate(h0):
            h0n.append(s)
            if s.startswith("v_exp") and k + 1 < len(h0) and h0[k + 1].startswith("v_cvt"):
                h0n.append("s_nop 0")
        for g, s in spread(h0n, 24, 33):
            put(g, s)
        for k, s in enumerate(h1):
            put(34, s)
            if s.startswith("v_exp") and k + 1 < len(h1) and h1[k + 1].startswith("v_cvt"):
                put(34, "s_nop 0")
        for g, s in spread(rdv, 16, 33):
            put(g, s)
        for g, s in spread(dm, 16, 33):
            put(g, s)
        self.emit_sched(mf, gaps, pre)
        e("s_waitcnt lgkmcnt(0)")
        self.stamp()
        carry = spread(self.ism_part2("B"), 0, 29)
        carry = self.iteration(0, carry, vm=16, pva_vf=A_VT, first=True)
        e(f"s_mov_b32 s{S_LOOP}, 7")
        self.label("L_loop")
        t = carry
        for m in (1, 2, 3, 4):
            le = None
            if m == 4:
                le = [f"s_sub_u32 s{S_LOOP}, s{S_LOOP}, 1", f"s_cmp_lg_u32 s{S_LOOP}, 0", "s_cbranch_scc1 L_loop"]
            t = self.iteration(m, t, loop_end=le)
        self.stamp()
        ah = 8 if cfg.get("ahead") else 0
        t = self.iteration(29, t, dma=False, vm=8 + ah)
        t = self.iteration(30, t, dma=False, vm=0, kread=False, bar=58)
        self.stamp()
        self.c("---- final PV")
        ds = [(g, s) for g, s in t if s.startswith("ds_")]
        sm = [(g, s) for g, s in t if not s.startswith("ds_")]
        self.emit_all([s for g, s in ds])
        e(f"v_lshlrev_b32 v32, 4, v{ln}")
        e(f"s_lshl_b32 s{S_T0}, s{S_W}, 14")
        e(f"s_xor_b32 s{S_T1}, s{S_T0}, 16384")
        e(f"v_add_u32 v33, s{S_T0}, v32")
        e(f"v_add_u32 v34, s{S_T1}, v32")
        e(f"s_lshl_b32 s{S_T0}, s{S_W}, 10")
        e(f"s_add_u32 s{S_T0}, s{S_T0}, {LDS_ML}")
        e(f"s_xor_b32 s{S_T1}, s{S_T0}, 1024")
        e(f"v_add_u32 v35, s{S_T0}, v32")
        e(f"v_add_u32 v36, s{S_T1}, v32")
        mf = self.pv_mfmas("A") + self.pv_mfmas("B")
        gaps = {}
        sml = []
        for k, (g, s) in enumerate(sm):
            sml.append(s)
            if s.startswith("v_exp") and k + 1 < len(sm) and sm[k + 1][1].startswith("v_cvt"):
                sml.append("s_nop 0")
        for g, s in spread(sml, 0, 15):
            put(g, s)
        put(18, f"s_lshl_b32 s{S_T2}, s{S_W}, 14")
        put(18, f"s_add_u32 s{S_T2}, s{S_T2}, {LDS_V}")
        put(18, f"v_and_b32 v42, 15, v{ln}")
        put(19, f"v_lshrrev_b32 v43, 4, v{ln}")
        put(19, f"v_mul_u32_u24 v40, 272, v42")
        put(20, f"v_and_b32 v44, 1, v43")
        put(20, f"v_lshl_add_u32 v40, v44, 5, v40")
        put(21, f"v_lshrrev_b32 v44, 1, v43")
        put(22, f"v_lshl_add_u32 v40, v44, 4, v40")
        put(23, f"v_add_u32 v40, s{S_T2}, v40")
        put(24, f"v_mul_u32_u24 v41, 272, v43")
        put(25, f"v_lshl_add_u32 v41, v42, 4, v41")
        put(26, f"v_add_u32 v41, s{S_T2}, v41")
        put(27, f"v_mov_b32 v8, v{V_MB}")
        put(28, f"v_mov_b32 v9, v{V_MB+1}")
        put(31, f"v_mov_b32 v10, v{V_LB}")
        for r4 in range(16):
            mi = 18 + 9 * (r4 // 8) + r4 % 8
            g = mi + 3
            if g > 35:
                g = 37
            put(g, f"ds_write_b128 v33, a[{A_OB+4*r4}:{A_OB+4*r4+3}] offset:{r4*1024}")
        put(36, "s_nop 7")
        put(38, f"v_mov_b32 v11, v{V_LB+4}")
        put(38, f"ds_write_b128 v35, v[8:11]")
        self.emit_sched(mf, gaps, pre={0: ["s_waitcnt lgkmcnt(8)"], 4: ["s_waitcnt lgkmcnt(0)"], 18: ["s_nop 1"]})
        e("s_waitcnt lgkmcnt(0)")
        e("s_barrier")
        self.stamp()
        e(f"ds_read_b128 v[8:11], v36")
        for r4 in range(16):
            e(f"ds_read_b128 v[{128+4*r4}:{128+4*r4+3}], v34 offset:{r4*1024}")
        e("s_waitcnt lgkmcnt(15)")
        for qb in range(2):
            e(f"v_max_f32 v{12+qb}, v{V_MA+qb}, v{8+qb}")
        for qb in range(2):
            e(f"v_sub_f32 v{24+qb}, v{V_MA+qb}, v{12+qb}")
            e(f"v_sub_f32 v{26+qb}, v{8+qb}, v{12+qb}")
        for qb in range(2):
            e(f"v_exp_f32 v{24+qb}, v{24+qb}")
            e(f"v_exp_f32 v{26+qb}, v{26+qb}")
        e("s_nop 0")
        for qb in range(2):
            e(f"v_mul_f32 v{28+qb}, v{V_LA+4*qb}, v{24+qb}")
        for qb in range(2):
            e(f"v_fma_f32 v{28+qb}, v{10+qb}, v{26+qb}, v{28+qb}")
        for qb in range(2):
            e(f"v_rcp_f32 v{28+qb}, v{28+qb}")
        e("s_nop 0")
        for qb in range(2):
            e(f"v_mul_f32 v{16+4*qb}, v{24+qb}, v{28+qb}")
            e(f"v_mul_f32 v{18+4*qb}, v{26+qb}, v{28+qb}")
        for qb in range(2):
            e(f"v_mov_b32 v{17+4*qb}, v{16+4*qb}")
            e(f"v_mov_b32 v{19+4*qb}, v{18+4*qb}")
        stf = cfg.get("stf", "")
        for qb in range(2):
            fa, fb = 16 + 4 * qb, 18 + 4 * qb
            for dp in range(4):
                gi = 4 * qb + dp
                base = 32 * qb + 8 * dp
                r4 = base // 4
                e(f"s_waitcnt lgkmcnt({min(15, 15-(r4+1)+gi)})")
                pk = 48 + 4 * (gi % 4)
                for k in range(0, 8, 2):
                    o = 128 + base + k
                    e(f"v_pk_mul_f32 v[{o}:{o+1}], v[{o}:{o+1}], v[{fb}:{fb+1}]")
                for k in range(0, 8, 2):
                    o = 128 + base + k
                    oa = V_OA + base + k
                    e(f"v_pk_fma_f32 v[{o}:{o+1}], v[{oa}:{oa+1}], v[{fa}:{fa+1}], v[{o}:{o+1}]")
                for k in range(4):
                    o = 128 + base + 2 * k
                    e(f"v_cvt_pk_bf16_f32 v{pk+k}, v{o}, v{o+1}")
                e("s_nop 1")
                e(f"v_permlane16_swap_b32 v{pk}, v{pk+2}")
                e(f"v_permlane16_swap_b32 v{pk+1}, v{pk+3}")
                e("s_nop 1")
                e(f"ds_write_b128 v40, v[{pk}:{pk+3}] offset:{qb*16*272+dp*64}")
        e("s_waitcnt lgkmcnt(0)")
        for k in range(8):
            e(f"ds_read_b128 v[{128+4*k}:{131+4*k}], v41 offset:{k*4*272}")
        e(f"s_lshl_b32 s{S_T0}, s{S_W}, 13")
        e(f"s_add_u32 s{S_T1}, s{S_T0}, 4096")
        for k in range(8):
            e(f"s_waitcnt lgkmcnt({7-k})")
            so = S_T0 if k < 4 else S_T1
            e(f"buffer_store_dwordx4 v[{128+4*k}:{131+4*k}], v32, s[{S_O}:{S_O+3}], s{so} offen offset:{(k%4)*1024}{stf}")
        if self.stamps:
            self.stamp()
            e("s_waitcnt vmcnt(0)")
            self.stamp()
            e("s_memrealtime s[100:101]")
            e("s_waitcnt lgkmcnt(0)")
            if 'dbgst' in self.exp:
                e("s_cmp_lg_u32 s2, 100")
                e("s_cbranch_scc1 L_done")
                e(f"s_cmp_lg_u32 s{S_W}, 0")
                e("s_cbranch_scc1 L_done")
                e("s_mov_b32 s8, s18"); e("s_mov_b32 s9, s19"); e("s_mov_b32 s10, 256"); e("s_mov_b32 s11, 0x00020000")
                e("v_mov_b32 v4, 0")
                e(f"v_cmp_eq_u32 vcc, 0, v{ln}")
                e("s_and_saveexec_b64 s[12:13], vcc")
                for k in range(1, self.nstamp):
                    e(f"s_sub_u32 s3, s{72+2*k}, s72")
                    e("v_mov_b32 v6, s3")
                    e(f"buffer_store_dword v6, v4, s[8:11], 0 offen offset:{4*k}")
                e("s_sub_u32 s3, s100, s98")
                e("v_mov_b32 v6, s3")
                e(f"buffer_store_dword v6, v4, s[8:11], 0 offen offset:0")
            else:
                e("s_mov_b32 s8, s18"); e("s_mov_b32 s9, s19"); e("s_mov_b32 s10, 0x1000000"); e("s_mov_b32 s11, 0x00020000")
                e("s_lshl_b32 s3, s2, 2")
                e(f"s_add_u32 s3, s3, s{S_W}")
                e("s_lshl_b32 s3, s3, 7")
                e("v_mov_b32 v4, s3")
                e(f"v_cmp_eq_u32 vcc, 0, v{ln}")
                e("s_and_saveexec_b64 s[12:13], vcc")
                for k in range(self.nstamp):
                    e(f"s_sub_u32 s3, s{72+2*k}, s72")
                    e("v_mov_b32 v6, s3")
                    e(f"buffer_store_dword v6, v4, s[8:11], 0 offen offset:{4*k}")
                e("v_mov_b32 v6, s100")
                e(f"buffer_store_dword v6, v4, s[8:11], 0 offen offset:{4*16}")
                e("v_mov_b32 v6, s98")
                e(f"buffer_store_dword v6, v4, s[8:11], 0 offen offset:{4*17}")
        self.label("L_done")
        e("s_endpgm")
        for u, X, src in self.stubs:
            self.label(f"L_stub{u}")
            if src is not None:
                S = self.blk(X)["S"]
                for i in range(16):
                    e(f"v_mov_b32 v{S+i}, v{src+i}")
            e(f"s_call_b64 s[{S_RET}:{S_RET+1}], L_slow{X}")
            e(f"s_branch L_back{u}")
        self.slow_path("A")
        self.slow_path("B")
        self.label("L_codeend")
        L.append('.section .rodata,"a"')
        L.append(".p2align 6")
        L.append(f".amdhsa_kernel {KNAME}")
        L.append("  .amdhsa_next_free_vgpr 512")
        L.append("  .amdhsa_next_free_sgpr 102")
        L.append("  .amdhsa_accum_offset 256")
        L.append("  .amdhsa_group_segment_fixed_size 0")
        L.append("  .amdhsa_kernarg_size 72")
        L.append("  .amdhsa_user_sgpr_count 2")
        L.append("  .amdhsa_user_sgpr_kernarg_segment_ptr 1")
        L.append("  .amdhsa_system_sgpr_workgroup_id_x 1")
        L.append(".end_amdhsa_kernel")
        return "\n".join(L) + "\n"


if __name__ == "__main__":
    ap = argparse.ArgumentParser()
    ap.add_argument("-o", default="k6.s")
    ap.add_argument("--no-nt", action="store_true")
    ap.add_argument("--stamps", action="store_true")
    ap.add_argument("--no-pf", action="store_true")
    ap.add_argument("--exp", default="")
    ap.add_argument("--cfg", default="")
    a = ap.parse_args()
    cfg = eval("dict(" + a.cfg + ")") if a.cfg else None
    g = Gen(nt=not a.no_nt, stamps=a.stamps, code_pf=not a.no_pf, exp=a.exp, cfg=cfg)
    open(a.o, "w").write(g.build())
```

```python
import sys, struct, argparse

KNAME = "standalone__tree_speculative_verify_tree_attention_over_candidate_token_tree__sampling_kernel"
HEADER = open("standalone__tree_speculative_verify_tree_attention_over_candidate_token_tree__sampling.s.ref").read().split("; Override launch")[0]


def f32bits(x):
    return struct.unpack("<I", struct.pack("<f", x))[0]


V_OA = 64
V_SA, V_SB = 128, 144
V_CA, V_CB = 160, 168
V_PA, V_PB = 176, 184
V_EA, V_EB = 192, 196
V_LA, V_LB = 200, 208
V_MA, V_MB = 216, 218
V_XA, V_XB = 220, 221
V_LANE = 222
V_KA = 224
V_VA = 228
V_DK = 236
V_DV = 240
V_ONE = 244
V_SL = 0
V_ST = 32
V_IT = 48
VTA = 248
A_OB = 0
A_QA, A_QB = 64, 96
A_KF = 128
A_VF = 160
A_VT = 192
A_KT = 224
S_K, S_V, S_Q, S_KT, S_VT, S_M, S_O = 20, 24, 28, 32, 36, 40, 44
S_W, S_I, S_J = 48, 49, 50
S_KOFF, S_VOFF = 51, 52
S_WB = 53
S_LOOP = 54
S_THR = 55
S_T4 = 59
S_RET = 60
S_T0, S_T1, S_T2, S_T3 = 62, 63, 64, 65
S_BH, S_QH = 66, 67
S_C = 68
S_PC = 70

LDS_V = 65536
LDS_KT = 131072
LDS_VT = 139264
LDS_ML = 147456
BIAS = 10.0
SCALE = (128 ** -0.5) * 1.4426950408889634
NG = 68
G_PVA, G_QKB, G_PVB = 16, 34, 50


def spread(ops, g0, g1):
    n = len(ops)
    k = g1 - g0 + 1
    return [(g0 + (i * k) // n, op) for i, op in enumerate(ops)]


class Gen:
    def __init__(self, nt=True, code_pf=True, stamps=False, exp="", cfg=None):
        self.L = []
        self.nt = " nt" if nt else ""
        self.code_pf = code_pf
        self.uid = 0
        self.stubs = []
        self.stamps = stamps
        self.nstamp = 0
        self.exp = exp
        self.cfg = dict(sma=22, smb=56, bar=41, stf=" nt", ahead=0, dma_lo=1, dma_hi=39, onefirst=0)
        if cfg:
            self.cfg.update(cfg)

    def e(self, s):
        self.L.append("  " + s)

    def label(self, s):
        self.L.append(s + ":")

    def c(self, s):
        self.L.append("  ; " + s)

    def stamp(self):
        if self.stamps:
            k = self.nstamp
            self.nstamp += 1
            assert k < 13
            self.e(f"s_memtime s[{72+2*k}:{73+2*k}]")

    def blk(self, X):
        if X == "A":
            return dict(S=V_SA, C=V_CA, P=V_PA, E=V_EA, L=V_LA, M=V_MA, Q=A_QA, IT=V_IT, X=V_XA)
        return dict(S=V_SB, C=V_CB, P=V_PB, E=V_EB, L=V_LB, M=V_MB, Q=A_QB, IT=V_IT + 8, X=V_XB)

    def qk_mfmas(self, X, kf=A_KF, cin=None, dst=None):
        r = self.blk(X)
        S = r["S"] if dst is None else dst
        Q = r["Q"]
        out = []
        for qb in range(2):
            for kt in range(2):
                s = S + 8 * qb + 4 * kt
                for ks in range(4):
                    if ks == 0 and cin != "self":
                        c = f"v[{r['C']+4*qb}:{r['C']+4*qb+3}]" if cin is None else cin
                    else:
                        c = f"v[{s}:{s+3}]"
                    k = kf + 4 * (4 * kt + ks)
                    q = Q + 4 * (4 * qb + ks)
                    out.append(f"v_mfma_f32_16x16x32_bf16 v[{s}:{s+3}], a[{k}:{k+3}], a[{q}:{q+3}], {c}")
        return out

    def pv_mfmas(self, X, vf=A_VF):
        r = self.blk(X)
        P, Lr = r["P"], r["L"]
        out = []
        for qb in range(2):
            grp = []
            for dt in range(8):
                f = vf + 4 * dt
                ob = 32 * qb + 4 * dt
                if X == "A":
                    o = f"v[{V_OA+ob}:{V_OA+ob+3}]"
                else:
                    o = f"a[{A_OB+ob}:{A_OB+ob+3}]"
                grp.append(f"v_mfma_f32_16x16x32_bf16 {o}, a[{f}:{f+3}], v[{P+4*qb}:{P+4*qb+3}], {o}")
            l = f"v[{Lr+4*qb}:{Lr+4*qb+3}]"
            grp.append(f"v_mfma_f32_16x16x32_bf16 {l}, v[{V_ONE}:{V_ONE+3}], v[{P+4*qb}:{P+4*qb+3}], {l}")
            out += grp
        return out

    def sm_stream(self, X, src=None):
        r = self.blk(X)
        S, P, E, XX = r["S"], r["P"], r["E"], r["X"]
        if src is not None:
            S = src
        out = []
        for e in range(16):
            out.append((2 * e, f"v_exp_f32 v{E+e%4}, v{S+e}"))
            if e % 2 == 1:
                k = e // 2
                out.append((2 * e + 1, f"v_cvt_pk_bf16_f32 v{P+k}, v{E+(e-1)%4}, v{E+e%4}"))
                if k == 3:
                    out.append((2 * e - 1, f"v_or3_b32 v{XX}, v{P}, v{P+1}, v{P+2}"))
                if k == 5:
                    out.append((2 * e - 1, f"v_or3_b32 v{XX}, v{XX}, v{P+3}, v{P+4}"))
                if k == 7:
                    out.append((2 * e - 1, f"v_or3_b32 v{XX}, v{XX}, v{P+5}, v{P+6}"))
        out.append((33, f"v_bitop3_b32 v{XX}, v{XX}, v{P+7}, s{S_THR} bitop3:0xa8"))
        out.append((35, f"v_cmp_ne_u32 vcc, 0, v{XX}"))
        self.uid += 1
        u = self.uid
        self.stubs.append((u, X, src))
        out.append((37, f"s_cbranch_vccnz L_stub{u}\nL_back{u}:"))
        out.sort(key=lambda x: x[0])
        return out

    def rowmax(self, S, t, dst, floor0=False):
        ops = [
            f"v_max3_f32 v{t}, v{S}, v{S+1}, v{S+2}",
            f"v_max3_f32 v{t+1}, v{S+3}, v{S+4}, v{S+5}",
            f"v_max3_f32 v{t}, v{t}, v{S+6}, v{S+7}",
            f"v_max_f32 v{t}, v{t}, v{t+1}",
            f"v_mov_b32 v{t+1}, v{t}",
            "s_nop 1",
            f"v_permlane16_swap_b32 v{t}, v{t+1}",
            "s_nop 1",
            f"v_max_f32 v{t}, v{t}, v{t+1}",
            f"v_mov_b32 v{t+1}, v{t}",
            "s_nop 1",
            f"v_permlane32_swap_b32 v{t}, v{t+1}",
            "s_nop 1",
        ]
        ops.append(f"v_max_f32 v{t}, v{t}, v{t+1}")
        ops.append(f"v_add_f32 v{dst}, {f32bits(BIAS):#x}, v{t}")
        if floor0:
            ops.append(f"v_max_f32 v{dst}, 0, v{dst}")
        return ops

    def ism_part1(self, X):
        r = self.blk(X)
        S, M, t = r["S"], r["M"], r["IT"]
        a = self.rowmax(S, t, M)
        b = self.rowmax(S + 8, t + 3, M + 1)
        ops = []
        for x, y in zip(a, b):
            if x.startswith("s_nop"):
                ops.append("s_nop 0")
            else:
                ops += [x, y]
        ops.append(f"v_sub_f32 v{t+6}, 0, v{M}")
        ops.append(f"v_sub_f32 v{t+7}, 0, v{M+1}")
        return ops

    def ism_part2(self, X):
        r = self.blk(X)
        S, C, P, E, M, t = r["S"], r["C"], r["P"], r["E"], r["M"], r["IT"]
        ops = []
        for i in range(16):
            ops.append(f"v_sub_f32 v{S+i}, v{S+i}, v{M+i//8}")
        ex = []
        for e in range(17):
            if e < 16:
                ex.append(f"v_exp_f32 v{E+e%4}, v{S+e}")
            if e < 8:
                ex.append(f"v_mov_b32 v{C+e}, v{t+6+e//4}")
            elif e == 16:
                ex.append("s_nop 0")
            p = e - 1
            if p >= 0 and p % 2 == 1:
                ex.append(f"v_cvt_pk_bf16_f32 v{P+p//2}, v{E+(p-1)%4}, v{E+p%4}")
        return ops + ex

    def emit_line(self, s):
        if "\n" in s:
            for x in s.split("\n"):
                self.emit_line(x)
            return
        if s.endswith(":"):
            self.label(s[:-1])
        else:
            self.e(s)

    def k_read(self, idx, slot, dst=A_KF, addr=V_KA, off=None):
        kt, ks = idx // 4, idx % 4
        o = (slot * 16384 if off is None else off) + kt * 4096
        return f"ds_read_b128 a[{dst+4*idx}:{dst+4*idx+3}], v{addr+ks} offset:{o}"

    def v_reads(self, dt, slot, dst=A_VF, addr=V_VA, off=None):
        o = slot * 16384 if off is None else off
        f = dst + 4 * dt
        return [f"ds_read_b64_tr_b16 a[{f}:{f+1}], v{addr+dt} offset:{o}",
                f"ds_read_b64_tr_b16 a[{f+2}:{f+3}], v{addr+dt} offset:{o+4096}"]

    def dma_k(self, q, soff=S_KOFF, srd=S_K, v=None):
        vv = V_DK + q if v is None else v
        return f"buffer_load_dwordx4 v{vv}, s[{srd}:{srd+3}], s{soff} offen offset:{q*1024}{self.nt} lds"

    def dma_v(self, q, soff=S_VOFF, srd=S_V, v=None):
        vv = V_DV + (q & 1) if v is None else v
        return f"buffer_load_dwordx4 v{vv}, s[{srd}:{srd+3}], s{soff} offen offset:{q*1024}{self.nt} lds"

    def dma_k_stage(self, slot):
        return ([f"s_add_u32 m0, s{S_WB}, {slot*16384}", "s_nop 0"] + [self.dma_k(q) for q in range(4)]
                + [f"s_add_u32 s{S_KOFF}, s{S_KOFF}, 16384"])

    def dma_v_stage(self, slot):
        return ([f"s_add_u32 m0, s{S_WB}, {LDS_V+slot*16384}", "s_nop 0"] + [self.dma_v(q) for q in range(4)]
                + [f"s_add_u32 s{S_VOFF}, s{S_VOFF}, 16384"])

    def emit_all(self, lines):
        for s in lines:
            self.emit_line(s)

    def emit_sched(self, mfmas, gaps, pre=None):
        pre = pre or {}
        n = len(mfmas)
        for k in range(n):
            for s in pre.get(k, []):
                self.emit_line(s)
            self.e(mfmas[k])
            for s in gaps.get(k, []):
                self.emit_line(s)
        for k in sorted(g for g in gaps if g >= n):
            for s in gaps[k]:
                self.emit_line(s)

    def plan(self):
        if hasattr(self, "_plan"):
            return self._plan
        cfg = self.cfg
        load = {}
        def add(g, w):
            load[g % NG] = load.get(g % NG, 0) + w
        uid, stubs = self.uid, list(self.stubs)
        for X, g0 in (("A", cfg["sma"]), ("B", cfg["smb"])):
            for g, s in self.sm_stream(X):
                add(g0 + g, 2 if s.startswith("v_exp") else 1)
        self.uid, self.stubs = uid, stubs
        add(cfg["bar"], 2)
        def place(lo, hi, w):
            best = min(range(lo, hi + 1), key=lambda g: (load.get(g % NG, 0) + (0 if g % 2 else 0.5), g))
            add(best, w)
            return best
        bar = cfg["bar"]
        if "dma" in cfg:
            dma = cfg["dma"]
            for g in dma: add(g, 2)
        else:
            lo, hi = cfg["dma_lo"], cfg["dma_hi"]
            dma = []
            for q in range(8):
                a = lo + (hi - lo + 1) * q // 8
                b = lo + (hi - lo + 1) * (q + 1) // 8 - 1
                dma.append(place(a, b, 2))
        kr, p = [], 0
        for i in range(8):
            lo = max(bar + 1, 42 + i, p)
            p = place(lo, min(lo + 3, 62 + i), 1)
            kr.append(p)
        vr, p = [], 0
        for k in range(16):
            lo = max(bar + 1, 59 + k // 2, p)
            p = place(lo, min(lo + 2, 77 + k // 2), 1)
            vr.append(p)
        self._plan = dict(dma=dma, kread=kr, vread=vr)
        self.c(f"plan: {self._plan}")
        self.c("load: " + " ".join(str(load.get(g, 0)) for g in range(NG)))
        return self._plan

    def iteration(self, m, carry, dma=True, vm=16, pva_vf=A_VF, kread=True, loop_end=None, bar=None, first=False):
        cfg = self.cfg
        pl = self.plan()
        mm = m % 4
        self.c(f"---- iteration {m} (mod 4 = {mm})")
        items = []

        def put(g, s, pri=1):
            if 'novalu' in self.exp and s.startswith('v_'):
                return
            if 'nods' in self.exp and s.startswith('ds_'):
                return
            if cfg.get("dsfirst", 1) and pri < 9:
                if s.startswith("v_") or s.startswith("s_nop"):
                    pri = 6
                elif s.startswith("ds_"):
                    pri = max(pri, 2)
            items.append((g, pri, len(items), s))

        mf = self.qk_mfmas("A") + self.pv_mfmas("A", pva_vf) + self.qk_mfmas("B") + self.pv_mfmas("B")
        assert len(mf) == NG
        for g, s in carry:
            put(g, s)
        for g, s in self.sm_stream("A"):
            put(cfg["sma"] + g, s)
        for g, s in self.sm_stream("B"):
            put(cfg["smb"] + g, s)
        bg = cfg["bar"] if bar is None else bar
        if dma and 'nodma' not in self.exp:
            gk, gv = pl["dma"][:4], pl["dma"][4:]
            ah = 1 if cfg.get("ahead") else 0
            if ah:
                assert gk[0] - 1 >= bg
            else:
                assert gv[3] <= bg and gk[0] >= 1
            md = (mm + ah) % 4
            put(gk[0] - 1, f"s_add_u32 m0, s{S_WB}, {md*16384}", 2)
            for q, g in enumerate(gk):
                put(g, self.dma_k(q), 2)
            assert gv[0] - 1 >= gk[3] and gv[3] < NG
            put(gv[0] - 1, f"s_add_u32 m0, s{S_WB}, {LDS_V+((md+3)%4)*16384}", 3)
            put(gv[0] - 1, f"s_add_u32 s{S_KOFF}, s{S_KOFF}, 16384", 3)
            for q, g in enumerate(gv):
                put(g, self.dma_v(q), 2)
            put(gv[3], f"s_add_u32 s{S_VOFF}, s{S_VOFF}, 16384", 3)
        pb = 0 if cfg.get("ahead") else 4
        put(bg, f"s_waitcnt vmcnt({vm})", pb)
        if 'nobar' not in self.exp:
            put(bg, "s_barrier", pb)
        if kread:
            for i in range(8):
                assert pl["kread"][i] >= 42 + i and pl["kread"][i] > bg
                put(pl["kread"][i], self.k_read(i, (mm + 2) % 4))
        vr = []
        for dt in range(8):
            vr += self.v_reads(dt, (mm + 1) % 4)
        for k, s in enumerate(vr):
            g = pl["vread"][k]
            assert g >= 59 + k // 2 and g > bg
            put(g, s)
        if loop_end:
            for s in loop_end:
                put(NG - 1, s, 9)
        items.sort()
        gaps = {}
        nxt = []
        for g, pri, _, s in items:
            if g >= NG:
                nxt.append((g - NG, s))
            else:
                gaps.setdefault(g, []).append(s)
        seq = sorted([(pl["kread"][i], 0, i, "K") for i in range(8)] +
                     [(pl["vread"][k], 1, k, "V") for k in range(16)])
        pre = {}

        def wait_for(pos, pred):
            issued = [x for x in seq if x[0] < NG + pos]
            last = max(i for i, x in enumerate(issued) if pred(x))
            assert all(x in issued for x in seq if pred(x))
            return min(len(issued) - 1 - last, 15)
        if not first:
            pre[0] = [f"s_waitcnt lgkmcnt({wait_for(0, lambda x: x[3]=='K')})"]
            pre[16] = [f"s_waitcnt lgkmcnt({wait_for(16, lambda x: x[3]=='V' and x[2] < 8)})"]
            pre[20] = [f"s_waitcnt lgkmcnt({wait_for(20, lambda x: x[3]=='V')})"]
        self.emit_sched(mf, gaps, pre)
        return nxt

    def slow_path(self, X):
        r = self.blk(X)
        S, C, P, Lr, M = r["S"], r["C"], r["P"], r["L"], r["M"]
        t = V_SL
        self.label(f"L_slow{X}")
        e = self.e
        for qb in range(2):
            d = t + 3
            f = t + 4
            self.emit_all(self.rowmax(S + 8 * qb, t, d, floor0=True))
            e(f"v_add_f32 v{M+qb}, v{M+qb}, v{d}")
            e(f"v_exp_f32 v{f}, -v{d}")
            e(f"v_sub_f32 v{t+5}, 0, v{M+qb}")
            for i in range(4):
                e(f"v_mov_b32 v{C+4*qb+i}, v{t+5}")
            e(f"v_mul_f32 v{Lr+4*qb}, v{Lr+4*qb}, v{f}")
            if X == "A":
                for i in range(32):
                    o = V_OA + 32 * qb + i
                    e(f"v_mul_f32 v{o}, v{o}, v{f}")
            else:
                for i in range(0, 32, 4):
                    for k in range(4):
                        e(f"v_accvgpr_read_b32 v{t+8+k}, a{A_OB+32*qb+i+k}")
                    for k in range(4):
                        e(f"v_mul_f32 v{t+8+k}, v{t+8+k}, v{f}")
                    for k in range(4):
                        e(f"v_accvgpr_write_b32 a{A_OB+32*qb+i+k}, v{t+8+k}")
            for i in range(0, 8, 4):
                for k in range(4):
                    e(f"v_sub_f32 v{t+8+k}, v{S+8*qb+i+k}, v{d}")
                for k in range(4):
                    e(f"v_exp_f32 v{t+8+k}, v{t+8+k}")
                e("s_nop 0")
                e(f"v_cvt_pk_bf16_f32 v{P+4*qb+i//2}, v{t+8}, v{t+9}")
                e(f"v_cvt_pk_bf16_f32 v{P+4*qb+i//2+1}, v{t+10}, v{t+11}")
        e("s_nop 1")
        e(f"s_setpc_b64 s[{S_RET}:{S_RET+1}]")

    def srd(self, d, lo, hi, off, size):
        e = self.e
        e(f"s_add_u32 s{d}, s{lo}, s{off}")
        e(f"s_addc_u32 s{d+1}, s{hi}, 0")
        e(f"s_mov_b32 s{d+2}, {size}")
        e(f"s_mov_b32 s{d+3}, 0x00020000")

    def build(self):
        e = self.e
        L = self.L
        cfg = self.cfg
        L.append(HEADER.rstrip())
        L.append("; @launch grid=(256,1,1) block=(256,1,1) lds=163840")
        L.append('.amdgcn_target "amdgcn-amd-amdhsa--gfx950"')
        L.append(".text")
        L.append(f".globl {KNAME}")
        L.append(".p2align 8")
        L.append(f".type {KNAME},@function")
        self.label(KNAME)
        self.stamp()
        if self.stamps:
            e("s_memrealtime s[98:99]")
        e("s_cmp_ge_u32 s2, 256")
        e("s_cbranch_scc1 L_done")
        e("s_load_dwordx8 s[4:11], s[0:1], 0")
        e("s_load_dwordx4 s[12:15], s[0:1], 32")
        e("s_load_dwordx2 s[16:17], s[0:1], 48")
        if self.stamps:
            e(f"s_load_dwordx2 s[18:19], s[0:1], {56 if 'dbgst' in self.exp else 64}")
        e(f"s_getpc_b64 s[{S_PC}:{S_PC+1}]")
        self.label("L_pcbase")
        e(f"v_lshrrev_b32 v1, 6, v0")
        e(f"v_and_b32 v{V_LANE}, 63, v0")
        ln = V_LANE
        if self.code_pf:
            e(f"v_lshlrev_b32 v13, 4, v0")
            e("s_cmp_ge_u32 s2, 32")
            e("s_cbranch_scc1 L_nopf")
            e("s_mov_b32 s3, L_codeend-L_pcbase-16")
            for k in range(5):
                e(f"v_min_u32 v12, s3, v13")
                e(f"global_load_dwordx4 v[24:27], v12, s[{S_PC}:{S_PC+1}]")
                e(f"v_add_u32 v13, 0x1000, v13")
            self.label("L_nopf")
        e("s_and_b32 s3, s2, 7")
        e(f"v_readfirstlane_b32 s{S_W}, v1")
        e(f"s_lshr_b32 s{S_BH}, s2, 4")
        e(f"s_lshl_b32 s{S_BH}, s{S_BH}, 3")
        e(f"s_add_u32 s{S_BH}, s{S_BH}, s3")
        if 'samebh' in self.exp:
            e(f"s_and_b32 s{S_BH}, s{S_BH}, 7")
        e(f"s_lshr_b32 s{S_QH}, s2, 3")
        e(f"s_and_b32 s{S_QH}, s{S_QH}, 1")
        e(f"s_lshr_b32 s{S_I}, s{S_W}, 1")
        e(f"s_and_b32 s{S_J}, s{S_W}, 1")
        e(f"s_lshl_b32 s{S_WB}, s{S_W}, 12")
        e(f"v_lshrrev_b32 v1, 4, v{ln}")
        e(f"v_and_b32 v2, 15, v{ln}")
        e(f"v_lshlrev_b32 v3, 8, v1")
        e(f"v_add_u32 v3, s{S_WB}, v3")
        for q in range(4):
            e(f"v_add_u32 v4, {4*q}, v1")
            e(f"v_xor_b32 v4, v4, v2")
            e(f"v_lshl_add_u32 v{V_DK+q}, v4, 4, v3")
        for q in range(2):
            e(f"v_add_u32 v4, {4*q}, v1")
            e(f"v_lshlrev_b32 v4, 1, v4")
            e(f"v_xor_b32 v4, v4, v2")
            e(f"v_lshl_add_u32 v{V_DV+q}, v4, 4, v3")
        e(f"v_lshlrev_b32 v7, 6, v2")
        e(f"v_lshl_add_u32 v7, v1, 3, v7")
        e(f"v_lshlrev_b32 v14, 4, v{ln}")
        e(f"s_lshl_b32 s{S_T0}, s{S_BH}, 16")
        e(f"s_lshl_b32 s{S_T1}, s{S_QH}, 15")
        e(f"s_add_u32 s{S_T0}, s{S_T0}, s{S_T1}")
        e(f"s_lshl_b32 s{S_T1}, s{S_BH}, 19")
        e(f"s_lshr_b32 s{S_T2}, s{S_BH}, 2")
        e(f"s_lshl_b32 s{S_T2}, s{S_T2}, 11")
        e(f"s_lshl_b32 s{S_T3}, s{S_W}, 13")
        e(f"s_mov_b32 s{S_KOFF}, 0")
        e(f"s_mov_b32 s{S_VOFF}, 0")
        e("s_waitcnt lgkmcnt(0)")
        self.stamp()
        self.srd(S_Q, 4, 5, S_T0, 32768)
        for k in range(4):
            e(f"buffer_load_dwordx4 v[{128+4*k}:{131+4*k}], v14, s[{S_Q}:{S_Q+3}], s{S_T3} offen offset:{k*1024}{self.nt}")
        e(f"s_add_u32 s{S_T3}, s{S_T3}, 4096")
        self.srd(S_K, 6, 7, S_T1, 524288)
        for k in range(4):
            e(f"buffer_load_dwordx4 v[{144+4*k}:{147+4*k}], v14, s[{S_Q}:{S_Q+3}], s{S_T3} offen offset:{k*1024}{self.nt}")
        self.emit_all(self.dma_k_stage(0))
        self.srd(S_M, 14, 15, S_T2, 2048)
        for qb in range(2):
            for kt in range(2):
                g = 2 * qb + kt
                e(f"buffer_load_dwordx2 v[{16+2*g}:{17+2*g}], v7, s[{S_M}:{S_M+3}], 0 offen offset:{qb*1024+kt*32}")
        self.srd(S_V, 8, 9, S_T1, 524288)
        e(f"s_lshl_b32 s{S_T1}, s{S_BH}, 13")
        self.srd(S_KT, 10, 11, S_T1, 8192)
        self.srd(S_VT, 12, 13, S_T1, 8192)
        self.srd(S_O, 16, 17, S_T0, 32768)
        e(f"s_lshl_b32 s{S_T4}, s{S_W}, 11")
        e(f"s_lshl_b32 s{S_T2}, s{S_J}, 3")
        e(f"v_lshlrev_b32 v8, 8, v1")
        e(f"v_add_u32 v8, s{S_T4}, v8")
        for q in range(2):
            e(f"v_add_u32 v9, s{S_T2}, v1")
            e(f"v_add_u32 v9, {4*q}, v9")
            e(f"v_xor_b32 v9, v9, v2")
            e(f"v_lshl_add_u32 v{(15,13)[q]}, v9, 4, v8")
            e(f"v_subrev_u32 v{(12,11)[q]}, s{S_T4}, v{V_DV+q}")
        e(f"s_mov_b32 s{S_T3}, 0")
        dV0 = self.dma_v_stage(0)
        dKT = [f"s_add_u32 m0, s{S_T4}, {LDS_KT}", "s_nop 0"] + [self.dma_k(q, soff=S_T3, srd=S_KT, v=(15, 13)[q]) for q in range(2)]
        dK1 = self.dma_k_stage(1)
        dVT = [f"s_add_u32 m0, s{S_T4}, {LDS_VT}", "s_nop 0"] + [self.dma_v(q, soff=S_T3, srd=S_VT, v=(12, 11)[q]) for q in range(2)]
        dV1 = self.dma_v_stage(1)
        e(f"s_lshl_b32 s{S_T2}, s{S_J}, 13")
        e(f"v_lshlrev_b32 v8, 8, v2")
        e(f"v_add_u32 v8, s{S_T2}, v8")
        for ks in range(4):
            e(f"v_add_u32 v10, {4*ks}, v1")
            e(f"v_xor_b32 v10, v10, v2")
            e(f"v_lshl_add_u32 v{V_KA+ks}, v10, 4, v8")
        e(f"v_lshrrev_b32 v9, 2, v2")
        e(f"v_lshl_add_u32 v10, v1, 2, v9")
        e(f"v_and_b32 v5, 7, v10")
        e(f"v_lshlrev_b32 v10, 8, v10")
        e(f"s_add_u32 s{S_T2}, s{S_T2}, {LDS_V}")
        e(f"v_add_u32 v10, s{S_T2}, v10")
        e(f"v_and_b32 v6, 3, v2")
        e(f"v_lshl_add_u32 v10, v6, 3, v10")
        for dt in range(8):
            e(f"v_xor_b32 v6, {dt}, v5")
            e(f"v_lshl_add_u32 v{V_VA+dt}, v6, 5, v10")
        for i in range(64):
            e(f"v_mov_b32 v{V_OA+i}, 0")
        for i in range(64):
            e(f"v_accvgpr_write_b32 a{A_OB+i}, 0")
        e(f"s_mov_b32 s{S_THR}, 0x40004000")
        for i in range(16):
            e(f"v_mov_b32 v{V_LA+i}, 0")
        for i in range(4):
            e(f"v_mov_b32 v{V_ONE+i}, 0x3f803f80")
        e(f"s_mov_b32 s{S_C}, {f32bits(SCALE):#x}")
        e(f"s_mov_b32 s{S_C+1}, {f32bits(SCALE):#x}")
        e(f"s_lshl_b32 s{S_T1}, s{S_I}, 16")
        e(f"s_add_u32 s{S_T1}, s{S_T1}, 49152")
        e(f"s_lshl_b32 s{S_T2}, s{S_J}, 13")
        e(f"s_add_u32 s{S_T2}, s{S_T2}, s{S_T1}")
        e(f"s_sub_u32 s{S_T2}, s{S_T2}, s{S_WB}")
        for q in range(4):
            e(f"v_add_u32 v{4+q}, s{S_T2}, v{V_DK+q}")
        e(f"s_lshl_b32 s{S_T2}, s{S_J}, 14")
        e(f"s_sub_u32 s{S_T2}, s{S_T1}, s{S_T2}")
        e(f"s_add_u32 s{S_T2}, s{S_T2}, 8192")
        for ks in range(4):
            e(f"v_add_u32 v{48+ks}, s{S_T1}, v{V_KA+ks}")
            e(f"v_add_u32 v{52+ks}, s{S_T2}, v{V_KA+ks}")
        e(f"s_lshl_b32 s{S_T2}, s{S_J}, 13")
        e(f"s_sub_u32 s{S_T1}, {LDS_KT}, s{S_T2}")
        e(f"s_sub_u32 s{S_T2}, {LDS_VT-LDS_V}, s{S_T2}")
        for ks in range(4):
            e(f"v_add_u32 v{ks}, s{S_T1}, v{V_KA+ks}")
        for dt in range(8):
            e(f"v_add_u32 v{VTA+dt}, s{S_T2}, v{V_VA+dt}")
        order = cfg.get("order", "mid")
        pend = [dV0, dKT, dK1, dVT, dV1]
        nv = 8
        nearly = {"late": 0, "mid": 3, "early": 5}[order]
        for lines in pend[:nearly]:
            self.emit_all(lines)
            nv += sum(1 for x in lines if x.startswith("buffer_load"))
        pend = pend[nearly:]
        self.stamp()
        for k in range(8):
            e(f"s_waitcnt vmcnt({nv + 7 - k})")
            if k == 0:
                self.stamp()
            if k % 2 == 1 and pend:
                lines = pend.pop(0)
                self.emit_all(lines)
                nv += sum(1 for x in lines if x.startswith("buffer_load"))
            for x in range(4):
                src = 128 + 4 * k + x
                t = 176 + 2 * x
                e(f"v_lshlrev_b32 v{t}, 16, v{src}")
                e(f"v_and_b32 v{t+1}, 0xffff0000, v{src}")
            for x in range(4):
                t = 176 + 2 * x
                e(f"v_pk_mul_f32 v[{t}:{t+1}], v[{t}:{t+1}], s[{S_C}:{S_C+1}]")
            o = 184 + 4 * (k % 2)
            for x in range(4):
                t = 176 + 2 * x
                e(f"v_cvt_pk_bf16_f32 v{o+x}, v{t}, v{t+1}")
            e(f"ds_write_b128 v{4+k%4}, v[{o}:{o+3}] offset:{(k>>2)*4096+(k&3)*1024}")
        for lines in pend:
            self.emit_all(lines)
        e(f"s_waitcnt vmcnt(16) lgkmcnt(0)")
        e("s_barrier")
        self.stamp()
        for ks in range(4):
            e(f"ds_read_b128 a[{A_QA+4*ks}:{A_QA+4*ks+3}], v{48+ks}")
            e(self.k_read(ks, 0))
        for ks in range(4):
            e(self.k_read(4 + ks, 0))
        for ks in range(4):
            e(f"ds_read_b128 a[{A_QA+16+4*ks}:{A_QA+16+4*ks+3}], v{48+ks} offset:4096")
        for qb in range(2):
            for ks in range(4):
                e(f"ds_read_b128 a[{A_QB+16*qb+4*ks}:{A_QB+16*qb+4*ks+3}], v{52+ks} offset:{qb*4096}")
        e(f"s_mov_b32 s{S_T0}, {f32bits(-1e9*1.4426950408889634):#x}")
        bias1 = []
        for g in range(4):
            for k in range(2):
                src = 16 + 2 * g + k
                d0 = V_ST + 4 * g + 2 * k
                bias1.append(f"v_lshlrev_b32 v{d0}, 16, v{src}")
                bias1.append(f"v_and_b32 v{d0+1}, 0xffff0000, v{src}")
        for i in range(16):
            bias1.append(f"v_sub_f32 v{V_ST+i}, 1.0, v{V_ST+i}")
        self.emit_all(bias1[:16])
        mf = self.qk_mfmas("A", cin="0") + self.qk_mfmas("B", cin="0")
        pre = {}
        for k in range(4):
            pre[k] = [f"s_waitcnt lgkmcnt({min(15, 24-2*(k+1))})"]
        for k in range(4):
            pre[4 + k] = [f"s_waitcnt lgkmcnt({min(15, 24-8-(k+1))})"]
        for k in range(4):
            pre[8 + k] = [f"s_waitcnt lgkmcnt({24-12-(k+1)})"]
        pre[16] = ["s_waitcnt lgkmcnt(4)"]
        pre[24] = ["s_waitcnt lgkmcnt(0)"]
        gaps = {}

        def put(g, s):
            gaps.setdefault(g, []).append(s)
        for g, s in spread(bias1[16:], 0, 7):
            put(g, s)
        for g, s in spread(self.dma_k_stage(2), 8, 17):
            put(g, s)
        tA = self.blk("A")["IT"]
        bias2 = [f"v_fma_f32 v{V_ST+i}, v{V_ST+i}, s{S_T0}, v{tA+6+i//8}" for i in range(16)]
        for g, s in spread(self.ism_part1("A") + bias2, 19, 31):
            put(g, s)
        self.emit_sched(mf, gaps, pre)
        e(f"s_waitcnt vmcnt(8)")
        e("s_barrier")
        self.stamp()
        for i in range(8):
            e(self.k_read(i, 0, dst=A_KT, addr=0, off=0))
        for dt in range(8):
            self.emit_all(self.v_reads(dt, 0))
        p2a = self.ism_part2("A")
        self.emit_all(p2a[:16])
        mf = self.qk_mfmas("A", kf=A_KT, cin="self", dst=V_ST) + self.pv_mfmas("A")
        pre = {0: ["s_waitcnt lgkmcnt(15)"], 16: ["s_waitcnt lgkmcnt(8)", "s_nop 1"]}
        gaps = {}
        rd = [self.k_read(i, 1) for i in range(8)]
        for g, s in spread(p2a[16:], 0, 15):
            put(g, s)
        for g, s in spread(rd, 0, 15):
            put(g, s)
        dm = self.dma_v_stage(2) + self.dma_k_stage(3)
        if cfg.get("ahead"):
            dm += self.dma_k_stage(0) + self.dma_v_stage(3)
        rdv = []
        for dt in range(8):
            rdv += self.v_reads(dt, 0, dst=A_VT, addr=VTA, off=0)
        for g, s in spread(self.ism_part1("B"), 16, 23):
            put(g, s)
        smt = self.sm_stream("A", src=V_ST)
        h0 = [s for g, s in smt if g < 17]
        h1 = [s for g, s in smt if g >= 17]
        h0n = []
        for k, s in enumerate(h0):
            h0n.append(s)
            if s.startswith("v_exp") and k + 1 < len(h0) and h0[k + 1].startswith("v_cvt"):
                h0n.append("s_nop 0")
        for g, s in spread(h0n, 24, 33):
            put(g, s)
        for k, s in enumerate(h1):
            put(34, s)
            if s.startswith("v_exp") and k + 1 < len(h1) and h1[k + 1].startswith("v_cvt"):
                put(34, "s_nop 0")
        for g, s in spread(rdv, 16, 33):
            put(g, s)
        for g, s in spread(dm, 16, 33):
            put(g, s)
        self.emit_sched(mf, gaps, pre)
        e("s_waitcnt lgkmcnt(0)")
        self.stamp()
        carry = spread(self.ism_part2("B"), 0, 29)
        carry = self.iteration(0, carry, vm=16, pva_vf=A_VT, first=True)
        e(f"s_mov_b32 s{S_LOOP}, 7")
        self.label("L_loop")
        t = carry
        for m in (1, 2, 3, 4):
            le = None
            if m == 4:
                le = [f"s_sub_u32 s{S_LOOP}, s{S_LOOP}, 1", f"s_cmp_lg_u32 s{S_LOOP}, 0", "s_cbranch_scc1 L_loop"]
            t = self.iteration(m, t, loop_end=le)
        self.stamp()
        ah = 8 if cfg.get("ahead") else 0
        t = self.iteration(29, t, dma=False, vm=8 + ah)
        t = self.iteration(30, t, dma=False, vm=0, kread=False, bar=58)
        self.stamp()
        self.c("---- final PV")
        ds = [(g, s) for g, s in t if s.startswith("ds_")]
        sm = [(g, s) for g, s in t if not s.startswith("ds_")]
        self.emit_all([s for g, s in ds])
        e(f"v_lshlrev_b32 v32, 4, v{ln}")
        e(f"s_lshl_b32 s{S_T0}, s{S_W}, 14")
        e(f"s_xor_b32 s{S_T1}, s{S_T0}, 16384")
        e(f"v_add_u32 v33, s{S_T0}, v32")
        e(f"v_add_u32 v34, s{S_T1}, v32")
        e(f"s_lshl_b32 s{S_T0}, s{S_W}, 10")
        e(f"s_add_u32 s{S_T0}, s{S_T0}, {LDS_ML}")
        e(f"s_xor_b32 s{S_T1}, s{S_T0}, 1024")
        e(f"v_add_u32 v35, s{S_T0}, v32")
        e(f"v_add_u32 v36, s{S_T1}, v32")
        pa, pb = self.pv_mfmas("A"), self.pv_mfmas("B")
        mf = pa[:9] + pb + pa[9:]
        gaps = {}
        sml = []
        for k, (g, s) in enumerate(sm):
            sml.append(s)
            if s.startswith("v_exp") and k + 1 < len(sm) and sm[k + 1][1].startswith("v_cvt"):
                sml.append("s_nop 0")
        for g, s in spread(sml, 0, 8):
            put(g, s)
        put(9, f"s_lshl_b32 s{S_T2}, s{S_W}, 14")
        put(9, f"s_add_u32 s{S_T2}, s{S_T2}, {LDS_V}")
        put(9, f"v_and_b32 v42, 15, v{ln}")
        put(10, f"v_lshrrev_b32 v43, 4, v{ln}")
        put(10, f"v_mul_u32_u24 v40, 272, v42")
        put(11, f"v_and_b32 v44, 1, v43")
        put(11, f"v_lshl_add_u32 v40, v44, 5, v40")
        put(30, f"v_lshrrev_b32 v44, 1, v43")
        put(31, f"v_lshl_add_u32 v40, v44, 4, v40")
        put(31, f"v_add_u32 v40, s{S_T2}, v40")
        put(32, f"v_mul_u32_u24 v41, 272, v43")
        put(32, f"v_lshl_add_u32 v41, v42, 4, v41")
        put(33, f"v_add_u32 v41, s{S_T2}, v41")
        put(20, f"v_mov_b32 v8, v{V_MB}")
        put(20, f"v_mov_b32 v9, v{V_MB+1}")
        put(21, f"v_mov_b32 v10, v{V_LB}")
        for r4 in range(16):
            mi = 9 + 9 * (r4 // 8) + r4 % 8
            put(mi + 3, f"ds_write_b128 v33, a[{A_OB+4*r4}:{A_OB+4*r4+3}] offset:{r4*1024}")
        put(29, f"v_mov_b32 v11, v{V_LB+4}")
        put(30, f"ds_write_b128 v35, v[8:11]")
        self.emit_sched(mf, gaps, pre={0: ["s_waitcnt lgkmcnt(8)"], 4: ["s_waitcnt lgkmcnt(0)"], 9: ["s_nop 1"]})
        e("s_waitcnt lgkmcnt(0)")
        e("s_barrier")
        self.stamp()
        e(f"ds_read_b128 v[8:11], v36")
        for r4 in range(16):
            e(f"ds_read_b128 v[{128+4*r4}:{128+4*r4+3}], v34 offset:{r4*1024}")
        e("s_waitcnt lgkmcnt(15)")
        for qb in range(2):
            e(f"v_max_f32 v{12+qb}, v{V_MA+qb}, v{8+qb}")
        for qb in range(2):
            e(f"v_sub_f32 v{24+qb}, v{V_MA+qb}, v{12+qb}")
            e(f"v_sub_f32 v{26+qb}, v{8+qb}, v{12+qb}")
        for qb in range(2):
            e(f"v_exp_f32 v{24+qb}, v{24+qb}")
            e(f"v_exp_f32 v{26+qb}, v{26+qb}")
        e("s_nop 0")
        for qb in range(2):
            e(f"v_mul_f32 v{28+qb}, v{V_LA+4*qb}, v{24+qb}")
        for qb in range(2):
            e(f"v_fma_f32 v{28+qb}, v{10+qb}, v{26+qb}, v{28+qb}")
        for qb in range(2):
            e(f"v_rcp_f32 v{28+qb}, v{28+qb}")
        e("s_nop 0")
        for qb in range(2):
            e(f"v_mul_f32 v{16+4*qb}, v{24+qb}, v{28+qb}")
            e(f"v_mul_f32 v{18+4*qb}, v{26+qb}, v{28+qb}")
        for qb in range(2):
            e(f"v_mov_b32 v{17+4*qb}, v{16+4*qb}")
            e(f"v_mov_b32 v{19+4*qb}, v{18+4*qb}")
        stf = cfg.get("stf", "")
        e(f"s_lshl_b32 s{S_T0}, s{S_W}, 13")
        e(f"s_add_u32 s{S_T1}, s{S_T0}, 4096")
        log = ["ml"] + [f"o{r}" for r in range(16)]
        def wait(tag):
            n = len(log) - 1 - log.index(tag)
            e(f"s_waitcnt lgkmcnt({min(15, n)})")
        for qb in range(2):
            fa, fb = 16 + 4 * qb, 18 + 4 * qb
            for dp in range(4):
                gi = 4 * qb + dp
                base = 32 * qb + 8 * dp
                r4 = base // 4
                wait(f"o{r4+1}")
                pk = 48 + 4 * (gi % 4)
                for k in range(0, 8, 2):
                    o = 128 + base + k
                    e(f"v_pk_mul_f32 v[{o}:{o+1}], v[{o}:{o+1}], v[{fb}:{fb+1}]")
                for k in range(0, 8, 2):
                    o = 128 + base + k
                    oa = V_OA + base + k
                    e(f"v_pk_fma_f32 v[{o}:{o+1}], v[{oa}:{oa+1}], v[{fa}:{fa+1}], v[{o}:{o+1}]")
                for k in range(4):
                    o = 128 + base + 2 * k
                    e(f"v_cvt_pk_bf16_f32 v{pk+k}, v{o}, v{o+1}")
                if qb == 1 and dp >= 2:
                    for k in (2 * (dp - 2), 2 * (dp - 2) + 1):
                        wait(f"r{k}")
                        e(f"buffer_store_dwordx4 v[{64+4*k}:{67+4*k}], v32, s[{S_O}:{S_O+3}], s{S_T0} offen offset:{k*1024}{stf}")
                else:
                    e("s_nop 1")
                e(f"v_permlane16_swap_b32 v{pk}, v{pk+2}")
                e(f"v_permlane16_swap_b32 v{pk+1}, v{pk+3}")
                e("s_nop 1")
                e(f"ds_write_b128 v40, v[{pk}:{pk+3}] offset:{qb*16*272+dp*64}")
                log.append(f"w{gi}")
                if qb == 1 and dp == 0:
                    for k in range(4):
                        e(f"ds_read_b128 v[{64+4*k}:{67+4*k}], v41 offset:{k*4*272}")
                        log.append(f"r{k}")
        for k in range(4, 8):
            e(f"ds_read_b128 v[{64+4*k}:{67+4*k}], v41 offset:{k*4*272}")
            log.append(f"r{k}")
        for k in range(4, 8):
            wait(f"r{k}")
            e(f"buffer_store_dwordx4 v[{64+4*k}:{67+4*k}], v32, s[{S_O}:{S_O+3}], s{S_T1} offen offset:{(k%4)*1024}{stf}")
        if self.stamps:
            self.stamp()
            e("s_waitcnt vmcnt(0)")
            self.stamp()
            e("s_memrealtime s[100:101]")
            e("s_waitcnt lgkmcnt(0)")
            if 'dbgst' in self.exp:
                e("s_cmp_lg_u32 s2, 100")
                e("s_cbranch_scc1 L_done")
                e(f"s_cmp_lg_u32 s{S_W}, 0")
                e("s_cbranch_scc1 L_done")
                e("s_mov_b32 s8, s18"); e("s_mov_b32 s9, s19"); e("s_mov_b32 s10, 256"); e("s_mov_b32 s11, 0x00020000")
                e("v_mov_b32 v4, 0")
                e(f"v_cmp_eq_u32 vcc, 0, v{ln}")
                e("s_and_saveexec_b64 s[12:13], vcc")
                for k in range(1, self.nstamp):
                    e(f"s_sub_u32 s3, s{72+2*k}, s72")
                    e("v_mov_b32 v6, s3")
                    e(f"buffer_store_dword v6, v4, s[8:11], 0 offen offset:{4*k}")
                e("s_sub_u32 s3, s100, s98")
                e("v_mov_b32 v6, s3")
                e(f"buffer_store_dword v6, v4, s[8:11], 0 offen offset:0")
            else:
                e("s_mov_b32 s8, s18"); e("s_mov_b32 s9, s19"); e("s_mov_b32 s10, 0x1000000"); e("s_mov_b32 s11, 0x00020000")
                e("s_lshl_b32 s3, s2, 2")
                e(f"s_add_u32 s3, s3, s{S_W}")
                e("s_lshl_b32 s3, s3, 7")
                e("v_mov_b32 v4, s3")
                e(f"v_cmp_eq_u32 vcc, 0, v{ln}")
                e("s_and_saveexec_b64 s[12:13], vcc")
                for k in range(self.nstamp):
                    e(f"s_sub_u32 s3, s{72+2*k}, s72")
                    e("v_mov_b32 v6, s3")
                    e(f"buffer_store_dword v6, v4, s[8:11], 0 offen offset:{4*k}")
                e("v_mov_b32 v6, s100")
                e(f"buffer_store_dword v6, v4, s[8:11], 0 offen offset:{4*16}")
                e("v_mov_b32 v6, s98")
                e(f"buffer_store_dword v6, v4, s[8:11], 0 offen offset:{4*17}")
        self.label("L_done")
        e("s_endpgm")
        for u, X, src in self.stubs:
            self.label(f"L_stub{u}")
            if src is not None:
                S = self.blk(X)["S"]
                for i in range(16):
                    e(f"v_mov_b32 v{S+i}, v{src+i}")
            e(f"s_call_b64 s[{S_RET}:{S_RET+1}], L_slow{X}")
            e(f"s_branch L_back{u}")
        self.slow_path("A")
        self.slow_path("B")
        self.label("L_codeend")
        L.append('.section .rodata,"a"')
        L.append(".p2align 6")
        L.append(f".amdhsa_kernel {KNAME}")
        L.append("  .amdhsa_next_free_vgpr 512")
        L.append("  .amdhsa_next_free_sgpr 102")
        L.append("  .amdhsa_accum_offset 256")
        L.append("  .amdhsa_group_segment_fixed_size 0")
        L.append("  .amdhsa_kernarg_size 72")
        L.append("  .amdhsa_user_sgpr_count 2")
        L.append("  .amdhsa_user_sgpr_kernarg_segment_ptr 1")
        L.append("  .amdhsa_system_sgpr_workgroup_id_x 1")
        L.append(".end_amdhsa_kernel")
        return "\n".join(L) + "\n"


if __name__ == "__main__":
    ap = argparse.ArgumentParser()
    ap.add_argument("-o", default="k6.s")
    ap.add_argument("--no-nt", action="store_true")
    ap.add_argument("--stamps", action="store_true")
    ap.add_argument("--no-pf", action="store_true")
    ap.add_argument("--exp", default="")
    ap.add_argument("--cfg", default="")
    a = ap.parse_args()
    cfg = eval("dict(" + a.cfg + ")") if a.cfg else None
    g = Gen(nt=not a.no_nt, stamps=a.stamps, code_pf=not a.no_pf, exp=a.exp, cfg=cfg)
    open(a.o, "w").write(g.build())
```

```python
import sys, struct, argparse

KNAME = "standalone__tree_speculative_verify_tree_attention_over_candidate_token_tree__sampling_kernel"
HEADER = open("standalone__tree_speculative_verify_tree_attention_over_candidate_token_tree__sampling.s.ref").read().split("; Override launch")[0]


def f32bits(x):
    return struct.unpack("<I", struct.pack("<f", x))[0]


V_OA = 64
V_SA, V_SB = 128, 144
V_CA, V_CB = 160, 168
V_PA, V_PB = 176, 184
V_EA, V_EB = 192, 196
V_LA, V_LB = 200, 208
V_MA, V_MB = 216, 218
V_XA, V_XB = 220, 221
V_LANE = 222
V_KA = 224
V_VA = 228
V_DK = 236
V_DV = 240
V_ONE = 244
V_SL = 0
V_ST = 32
V_IT = 48
VTA = 248
A_OB = 0
A_QA, A_QB = 64, 96
A_KF = 128
A_VF = 160
A_VT = 192
A_KT = 224
S_K, S_V, S_Q, S_KT, S_VT, S_M, S_O = 20, 24, 28, 32, 36, 40, 44
S_W, S_I, S_J = 48, 49, 50
S_KOFF, S_VOFF = 51, 52
S_WB = 53
S_LOOP = 54
S_THR = 55
S_T4 = 59
S_RET = 60
S_T0, S_T1, S_T2, S_T3 = 62, 63, 64, 65
S_BH, S_QH = 66, 67
S_C = 68
S_PC = 70

LDS_V = 65536
LDS_KT = 131072
LDS_VT = 139264
LDS_ML = 147456
BIAS = 10.0
SCALE = (128 ** -0.5) * 1.4426950408889634
NG = 68
G_PVA, G_QKB, G_PVB = 16, 34, 50


def spread(ops, g0, g1):
    n = len(ops)
    k = g1 - g0 + 1
    return [(g0 + (i * k) // n, op) for i, op in enumerate(ops)]


class Gen:
    def __init__(self, nt=True, code_pf=True, stamps=False, exp="", cfg=None):
        self.L = []
        self.nt = " nt" if nt else ""
        self.code_pf = code_pf
        self.uid = 0
        self.stubs = []
        self.stamps = stamps
        self.nstamp = 0
        self.exp = exp
        self.cfg = dict(sma=22, smb=56, bar=5, stf=" nt",
                        kread=[7, 9, 11, 15, 17, 19, 21, 23],
                        vread=[29, 33, 35, 37, 41, 43, 45, 49, 51, 53, 55, 57, 59, 61, 61, 63],
                        dma=[13, 20, 27, 31, 39, 47, 54, 65], lastbar=27)
        if cfg:
            self.cfg.update(cfg)

    def e(self, s):
        self.L.append("  " + s)

    def label(self, s):
        self.L.append(s + ":")

    def c(self, s):
        self.L.append("  ; " + s)

    def stamp(self):
        if self.stamps:
            k = self.nstamp
            self.nstamp += 1
            assert k < 13
            self.e(f"s_memtime s[{72+2*k}:{73+2*k}]")

    def blk(self, X):
        if X == "A":
            return dict(S=V_SA, C=V_CA, P=V_PA, E=V_EA, L=V_LA, M=V_MA, Q=A_QA, IT=V_IT, X=V_XA)
        return dict(S=V_SB, C=V_CB, P=V_PB, E=V_EB, L=V_LB, M=V_MB, Q=A_QB, IT=V_IT + 8, X=V_XB)

    def qk_mfmas(self, X, kf=A_KF, cin=None, dst=None):
        r = self.blk(X)
        S = r["S"] if dst is None else dst
        Q = r["Q"]
        out = []
        for qb in range(2):
            for kt in range(2):
                s = S + 8 * qb + 4 * kt
                for ks in range(4):
                    if ks == 0 and cin != "self":
                        c = f"v[{r['C']+4*qb}:{r['C']+4*qb+3}]" if cin is None else cin
                    else:
                        c = f"v[{s}:{s+3}]"
                    k = kf + 4 * (4 * kt + ks)
                    q = Q + 4 * (4 * qb + ks)
                    out.append(f"v_mfma_f32_16x16x32_bf16 v[{s}:{s+3}], a[{k}:{k+3}], a[{q}:{q+3}], {c}")
        return out

    def pv_mfmas(self, X, vf=A_VF):
        r = self.blk(X)
        P, Lr = r["P"], r["L"]
        out = []
        for qb in range(2):
            grp = []
            for dt in range(8):
                f = vf + 4 * dt
                ob = 32 * qb + 4 * dt
                if X == "A":
                    o = f"v[{V_OA+ob}:{V_OA+ob+3}]"
                else:
                    o = f"a[{A_OB+ob}:{A_OB+ob+3}]"
                grp.append(f"v_mfma_f32_16x16x32_bf16 {o}, a[{f}:{f+3}], v[{P+4*qb}:{P+4*qb+3}], {o}")
            l = f"v[{Lr+4*qb}:{Lr+4*qb+3}]"
            grp.append(f"v_mfma_f32_16x16x32_bf16 {l}, v[{V_ONE}:{V_ONE+3}], v[{P+4*qb}:{P+4*qb+3}], {l}")
            out += grp
        return out

    def sm_stream(self, X, src=None):
        r = self.blk(X)
        S, P, E, XX = r["S"], r["P"], r["E"], r["X"]
        if src is not None:
            S = src
        out = []
        for e in range(16):
            out.append((2 * e, f"v_exp_f32 v{E+e%4}, v{S+e}"))
            if e % 2 == 1:
                k = e // 2
                out.append((2 * e + 1, f"v_cvt_pk_bf16_f32 v{P+k}, v{E+(e-1)%4}, v{E+e%4}"))
                if k == 3:
                    out.append((2 * e - 1, f"v_or3_b32 v{XX}, v{P}, v{P+1}, v{P+2}"))
                if k == 5:
                    out.append((2 * e - 1, f"v_or3_b32 v{XX}, v{XX}, v{P+3}, v{P+4}"))
                if k == 7:
                    out.append((2 * e - 1, f"v_or3_b32 v{XX}, v{XX}, v{P+5}, v{P+6}"))
        out.append((33, f"v_bitop3_b32 v{XX}, v{XX}, v{P+7}, s{S_THR} bitop3:0xa8"))
        out.append((35, f"v_cmp_ne_u32 vcc, 0, v{XX}"))
        self.uid += 1
        u = self.uid
        self.stubs.append((u, X, src))
        out.append((37, f"s_cbranch_vccnz L_stub{u}\nL_back{u}:"))
        out.sort(key=lambda x: x[0])
        return out

    def rowmax(self, S, t, dst, floor0=False):
        ops = [
            f"v_max3_f32 v{t}, v{S}, v{S+1}, v{S+2}",
            f"v_max3_f32 v{t+1}, v{S+3}, v{S+4}, v{S+5}",
            f"v_max3_f32 v{t}, v{t}, v{S+6}, v{S+7}",
            f"v_max_f32 v{t}, v{t}, v{t+1}",
            f"v_mov_b32 v{t+1}, v{t}",
            "s_nop 1",
            f"v_permlane16_swap_b32 v{t}, v{t+1}",
            "s_nop 1",
            f"v_max_f32 v{t}, v{t}, v{t+1}",
            f"v_mov_b32 v{t+1}, v{t}",
            "s_nop 1",
            f"v_permlane32_swap_b32 v{t}, v{t+1}",
            "s_nop 1",
        ]
        ops.append(f"v_max_f32 v{t}, v{t}, v{t+1}")
        ops.append(f"v_add_f32 v{dst}, {f32bits(BIAS):#x}, v{t}")
        if floor0:
            ops.append(f"v_max_f32 v{dst}, 0, v{dst}")
        return ops

    def ism_part1(self, X):
        r = self.blk(X)
        S, M, t = r["S"], r["M"], r["IT"]
        a = self.rowmax(S, t, M)
        b = self.rowmax(S + 8, t + 3, M + 1)
        ops = []
        for x, y in zip(a, b):
            if x.startswith("s_nop"):
                ops.append("s_nop 0")
            else:
                ops += [x, y]
        ops.append(f"v_sub_f32 v{t+6}, 0, v{M}")
        ops.append(f"v_sub_f32 v{t+7}, 0, v{M+1}")
        return ops

    def ism_part2(self, X):
        r = self.blk(X)
        S, C, P, E, M, t = r["S"], r["C"], r["P"], r["E"], r["M"], r["IT"]
        ops = []
        for i in range(16):
            ops.append(f"v_sub_f32 v{S+i}, v{S+i}, v{M+i//8}")
        ex = []
        for e in range(17):
            if e < 16:
                ex.append(f"v_exp_f32 v{E+e%4}, v{S+e}")
            if e < 8:
                ex.append(f"v_mov_b32 v{C+e}, v{t+6+e//4}")
            elif e == 16:
                ex.append("s_nop 0")
            p = e - 1
            if p >= 0 and p % 2 == 1:
                ex.append(f"v_cvt_pk_bf16_f32 v{P+p//2}, v{E+(p-1)%4}, v{E+p%4}")
        return ops + ex

    def emit_line(self, s):
        if "\n" in s:
            for x in s.split("\n"):
                self.emit_line(x)
            return
        if s.endswith(":"):
            self.label(s[:-1])
        else:
            self.e(s)

    def k_read(self, idx, slot, dst=A_KF, addr=V_KA, off=None):
        kt, ks = idx // 4, idx % 4
        o = (slot * 16384 if off is None else off) + kt * 4096
        return f"ds_read_b128 a[{dst+4*idx}:{dst+4*idx+3}], v{addr+ks} offset:{o}"

    def v_reads(self, dt, slot, dst=A_VF, addr=V_VA, off=None):
        o = slot * 16384 if off is None else off
        f = dst + 4 * dt
        return [f"ds_read_b64_tr_b16 a[{f}:{f+1}], v{addr+dt} offset:{o}",
                f"ds_read_b64_tr_b16 a[{f+2}:{f+3}], v{addr+dt} offset:{o+4096}"]

    def dma_k(self, q, soff=S_KOFF, srd=S_K, v=None):
        vv = V_DK + q if v is None else v
        return f"buffer_load_dwordx4 v{vv}, s[{srd}:{srd+3}], s{soff} offen offset:{q*1024}{self.nt} lds"

    def dma_v(self, q, soff=S_VOFF, srd=S_V, v=None):
        vv = V_DV + (q & 1) if v is None else v
        return f"buffer_load_dwordx4 v{vv}, s[{srd}:{srd+3}], s{soff} offen offset:{q*1024}{self.nt} lds"

    def dma_k_stage(self, slot):
        return ([f"s_add_u32 m0, s{S_WB}, {slot*16384}", "s_nop 0"] + [self.dma_k(q) for q in range(4)]
                + [f"s_add_u32 s{S_KOFF}, s{S_KOFF}, 16384"])

    def dma_v_stage(self, slot):
        return ([f"s_add_u32 m0, s{S_WB}, {LDS_V+slot*16384}", "s_nop 0"] + [self.dma_v(q) for q in range(4)]
                + [f"s_add_u32 s{S_VOFF}, s{S_VOFF}, 16384"])

    def emit_all(self, lines):
        for s in lines:
            self.emit_line(s)

    def emit_sched(self, mfmas, gaps, pre=None):
        pre = pre or {}
        n = len(mfmas)
        for k in range(n):
            for s in pre.get(k, []):
                self.emit_line(s)
            self.e(mfmas[k])
            for s in gaps.get(k, []):
                self.emit_line(s)
        for k in sorted(g for g in gaps if g >= n):
            for s in gaps[k]:
                self.emit_line(s)

    def iteration(self, m, carry, dma=True, vm=16, pva_vf=None, kread=True, loop_end=None, bar=None, first=False):
        cfg = self.cfg
        mm = m % 4
        KB, VB = (A_KF, A_KT), (A_VF, A_VT)
        self.c(f"---- iteration {m} (mod 4 = {mm})")
        items = []

        def put(g, s, pri=None):
            if 'novalu' in self.exp and s.startswith('v_'):
                return
            if 'nods' in self.exp and s.startswith('ds_'):
                return
            if pri is None:
                if s.startswith("v_") or s.startswith("s_nop"):
                    pri = 6
                elif s.startswith("ds_") or s.startswith("buffer_"):
                    pri = 3
                else:
                    pri = 2
            items.append((g, pri, len(items), s))

        kf, vf = KB[(m + 1) % 2], VB[m % 2]
        mf = (self.qk_mfmas("A", kf) + self.pv_mfmas("A", vf if pva_vf is None else pva_vf)
              + self.qk_mfmas("B", kf) + self.pv_mfmas("B", vf))
        assert len(mf) == NG
        for g, s in carry:
            put(g, s)
        for g, s in self.sm_stream("A"):
            put(cfg["sma"] + g, s)
        for g, s in self.sm_stream("B"):
            put(cfg["smb"] + g, s)
        bg = cfg["bar"] if bar is None else bar
        if dma and 'nodma' not in self.exp:
            gk, gv = cfg["dma"][:4], cfg["dma"][4:]
            assert gk[0] - 1 > bg and gv[0] - 1 >= gk[3] and gv[3] + 1 < NG
            put(gk[0] - 1, f"s_add_u32 m0, s{S_WB}, {((mm+1)%4)*16384}")
            for q, g in enumerate(gk):
                put(g, self.dma_k(q))
            put(gv[0] - 1, f"s_add_u32 m0, s{S_WB}, {LDS_V+mm*16384}", 4 if gv[0] - 1 == gk[3] else None)
            put(gk[3] + 1, f"s_add_u32 s{S_KOFF}, s{S_KOFF}, 16384")
            for q, g in enumerate(gv):
                put(g, self.dma_v(q))
            put(gv[3] + 1, f"s_add_u32 s{S_VOFF}, s{S_VOFF}, 16384")
        put(bg, f"s_waitcnt vmcnt({vm}) lgkmcnt(0)", 0)
        if 'nobar' not in self.exp:
            put(bg, "s_barrier", 1)
        if kread:
            for i in range(8):
                assert bg < cfg["kread"][i] < NG
                put(cfg["kread"][i], self.k_read(i, (mm + 2) % 4, dst=KB[m % 2]))
        vr = []
        for dt in range(8):
            vr += self.v_reads(dt, (mm + 1) % 4, dst=VB[(m + 1) % 2])
        for k, s in enumerate(vr):
            g = cfg["vread"][k]
            assert bg < g < NG and g >= 26 + k // 2
            put(g, s)
        if loop_end:
            put(NG - 3, loop_end[0])
            put(NG - 2, loop_end[1])
            put(NG - 1, loop_end[2], 9)
        items.sort()
        gaps = {}
        nxt = []
        for g, pri, _, s in items:
            if g >= NG:
                nxt.append((g - NG, s))
            else:
                gaps.setdefault(g, []).append(s)
        pre = {}
        if not first:
            assert max(cfg["kread"]) < min(cfg["vread"])
            pre[0] = ["s_waitcnt lgkmcnt(15)"]
            if bg >= 16:
                pre[16] = ["s_waitcnt lgkmcnt(0)"]
        self.emit_sched(mf, gaps, pre)
        return nxt

    def slow_path(self, X):
        r = self.blk(X)
        S, C, P, Lr, M = r["S"], r["C"], r["P"], r["L"], r["M"]
        t = V_SL
        self.label(f"L_slow{X}")
        e = self.e
        for qb in range(2):
            d = t + 3
            f = t + 4
            self.emit_all(self.rowmax(S + 8 * qb, t, d, floor0=True))
            e(f"v_add_f32 v{M+qb}, v{M+qb}, v{d}")
            e(f"v_exp_f32 v{f}, -v{d}")
            e(f"v_sub_f32 v{t+5}, 0, v{M+qb}")
            for i in range(4):
                e(f"v_mov_b32 v{C+4*qb+i}, v{t+5}")
            e(f"v_mul_f32 v{Lr+4*qb}, v{Lr+4*qb}, v{f}")
            if X == "A":
                for i in range(32):
                    o = V_OA + 32 * qb + i
                    e(f"v_mul_f32 v{o}, v{o}, v{f}")
            else:
                for i in range(0, 32, 4):
                    for k in range(4):
                        e(f"v_accvgpr_read_b32 v{t+8+k}, a{A_OB+32*qb+i+k}")
                    for k in range(4):
                        e(f"v_mul_f32 v{t+8+k}, v{t+8+k}, v{f}")
                    for k in range(4):
                        e(f"v_accvgpr_write_b32 a{A_OB+32*qb+i+k}, v{t+8+k}")
            for i in range(0, 8, 4):
                for k in range(4):
                    e(f"v_sub_f32 v{t+8+k}, v{S+8*qb+i+k}, v{d}")
                for k in range(4):
                    e(f"v_exp_f32 v{t+8+k}, v{t+8+k}")
                e("s_nop 0")
                e(f"v_cvt_pk_bf16_f32 v{P+4*qb+i//2}, v{t+8}, v{t+9}")
                e(f"v_cvt_pk_bf16_f32 v{P+4*qb+i//2+1}, v{t+10}, v{t+11}")
        e("s_nop 1")
        e(f"s_setpc_b64 s[{S_RET}:{S_RET+1}]")

    def srd(self, d, lo, hi, off, size):
        e = self.e
        e(f"s_add_u32 s{d}, s{lo}, s{off}")
        e(f"s_addc_u32 s{d+1}, s{hi}, 0")
        e(f"s_mov_b32 s{d+2}, {size}")
        e(f"s_mov_b32 s{d+3}, 0x00020000")

    def build(self):
        e = self.e
        L = self.L
        cfg = self.cfg
        L.append(HEADER.rstrip())
        L.append("; @launch grid=(256,1,1) block=(256,1,1) lds=163840")
        L.append('.amdgcn_target "amdgcn-amd-amdhsa--gfx950"')
        L.append(".text")
        L.append(f".globl {KNAME}")
        L.append(".p2align 8")
        L.append(f".type {KNAME},@function")
        self.label(KNAME)
        self.stamp()
        if self.stamps:
            e("s_memrealtime s[98:99]")
        e("s_cmp_ge_u32 s2, 256")
        e("s_cbranch_scc1 L_done")
        e("s_load_dwordx8 s[4:11], s[0:1], 0")
        e("s_load_dwordx4 s[12:15], s[0:1], 32")
        e("s_load_dwordx2 s[16:17], s[0:1], 48")
        if self.stamps:
            e(f"s_load_dwordx2 s[18:19], s[0:1], {56 if 'dbgst' in self.exp else 64}")
        e(f"s_getpc_b64 s[{S_PC}:{S_PC+1}]")
        self.label("L_pcbase")
        e(f"v_lshrrev_b32 v1, 6, v0")
        e(f"v_and_b32 v{V_LANE}, 63, v0")
        ln = V_LANE
        if self.code_pf:
            e(f"v_lshlrev_b32 v13, 4, v0")
            e("s_cmp_ge_u32 s2, 32")
            e("s_cbranch_scc1 L_nopf")
            e("s_mov_b32 s3, L_codeend-L_pcbase-16")
            for k in range(5):
                e(f"v_min_u32 v12, s3, v13")
                e(f"global_load_dwordx4 v[24:27], v12, s[{S_PC}:{S_PC+1}]")
                e(f"v_add_u32 v13, 0x1000, v13")
            self.label("L_nopf")
        e("s_and_b32 s3, s2, 7")
        e(f"v_readfirstlane_b32 s{S_W}, v1")
        e(f"s_lshr_b32 s{S_BH}, s2, 4")
        e(f"s_lshl_b32 s{S_BH}, s{S_BH}, 3")
        e(f"s_add_u32 s{S_BH}, s{S_BH}, s3")
        if 'samebh' in self.exp:
            e(f"s_and_b32 s{S_BH}, s{S_BH}, 7")
        e(f"s_lshr_b32 s{S_QH}, s2, 3")
        e(f"s_and_b32 s{S_QH}, s{S_QH}, 1")
        e(f"s_lshr_b32 s{S_I}, s{S_W}, 1")
        e(f"s_and_b32 s{S_J}, s{S_W}, 1")
        e(f"s_lshl_b32 s{S_WB}, s{S_W}, 12")
        e(f"v_lshrrev_b32 v1, 4, v{ln}")
        e(f"v_and_b32 v2, 15, v{ln}")
        e(f"v_lshlrev_b32 v3, 8, v1")
        e(f"v_add_u32 v3, s{S_WB}, v3")
        for q in range(4):
            e(f"v_add_u32 v4, {4*q}, v1")
            e(f"v_xor_b32 v4, v4, v2")
            e(f"v_lshl_add_u32 v{V_DK+q}, v4, 4, v3")
        for q in range(2):
            e(f"v_add_u32 v4, {4*q}, v1")
            e(f"v_lshlrev_b32 v4, 1, v4")
            e(f"v_xor_b32 v4, v4, v2")
            e(f"v_lshl_add_u32 v{V_DV+q}, v4, 4, v3")
        e(f"v_lshlrev_b32 v7, 6, v2")
        e(f"v_lshl_add_u32 v7, v1, 3, v7")
        e(f"v_lshlrev_b32 v14, 4, v{ln}")
        e(f"s_lshl_b32 s{S_T0}, s{S_BH}, 16")
        e(f"s_lshl_b32 s{S_T1}, s{S_QH}, 15")
        e(f"s_add_u32 s{S_T0}, s{S_T0}, s{S_T1}")
        e(f"s_lshl_b32 s{S_T1}, s{S_BH}, 19")
        e(f"s_lshr_b32 s{S_T2}, s{S_BH}, 2")
        e(f"s_lshl_b32 s{S_T2}, s{S_T2}, 11")
        e(f"s_lshl_b32 s{S_T3}, s{S_W}, 13")
        e(f"s_mov_b32 s{S_KOFF}, 0")
        e(f"s_mov_b32 s{S_VOFF}, 0")
        e("s_waitcnt lgkmcnt(0)")
        self.stamp()
        self.srd(S_Q, 4, 5, S_T0, 32768)
        for k in range(4):
            e(f"buffer_load_dwordx4 v[{128+4*k}:{131+4*k}], v14, s[{S_Q}:{S_Q+3}], s{S_T3} offen offset:{k*1024}{self.nt}")
        e(f"s_add_u32 s{S_T3}, s{S_T3}, 4096")
        self.srd(S_K, 6, 7, S_T1, 524288)
        for k in range(4):
            e(f"buffer_load_dwordx4 v[{144+4*k}:{147+4*k}], v14, s[{S_Q}:{S_Q+3}], s{S_T3} offen offset:{k*1024}{self.nt}")
        self.emit_all(self.dma_k_stage(0))
        self.srd(S_M, 14, 15, S_T2, 2048)
        for qb in range(2):
            for kt in range(2):
                g = 2 * qb + kt
                e(f"buffer_load_dwordx2 v[{16+2*g}:{17+2*g}], v7, s[{S_M}:{S_M+3}], 0 offen offset:{qb*1024+kt*32}")
        self.srd(S_V, 8, 9, S_T1, 524288)
        e(f"s_lshl_b32 s{S_T1}, s{S_BH}, 13")
        self.srd(S_KT, 10, 11, S_T1, 8192)
        self.srd(S_VT, 12, 13, S_T1, 8192)
        self.srd(S_O, 16, 17, S_T0, 32768)
        e(f"s_lshl_b32 s{S_T4}, s{S_W}, 11")
        e(f"s_lshl_b32 s{S_T2}, s{S_J}, 3")
        e(f"v_lshlrev_b32 v8, 8, v1")
        e(f"v_add_u32 v8, s{S_T4}, v8")
        for q in range(2):
            e(f"v_add_u32 v9, s{S_T2}, v1")
            e(f"v_add_u32 v9, {4*q}, v9")
            e(f"v_xor_b32 v9, v9, v2")
            e(f"v_lshl_add_u32 v{(15,13)[q]}, v9, 4, v8")
            e(f"v_subrev_u32 v{(12,11)[q]}, s{S_T4}, v{V_DV+q}")
        e(f"s_mov_b32 s{S_T3}, 0")
        dV0 = self.dma_v_stage(0)
        dKT = [f"s_add_u32 m0, s{S_T4}, {LDS_KT}", "s_nop 0"] + [self.dma_k(q, soff=S_T3, srd=S_KT, v=(15, 13)[q]) for q in range(2)]
        dK1 = self.dma_k_stage(1)
        dVT = [f"s_add_u32 m0, s{S_T4}, {LDS_VT}", "s_nop 0"] + [self.dma_v(q, soff=S_T3, srd=S_VT, v=(12, 11)[q]) for q in range(2)]
        dV1 = self.dma_v_stage(1)
        e(f"s_lshl_b32 s{S_T2}, s{S_J}, 13")
        e(f"v_lshlrev_b32 v8, 8, v2")
        e(f"v_add_u32 v8, s{S_T2}, v8")
        for ks in range(4):
            e(f"v_add_u32 v10, {4*ks}, v1")
            e(f"v_xor_b32 v10, v10, v2")
            e(f"v_lshl_add_u32 v{V_KA+ks}, v10, 4, v8")
        e(f"v_lshrrev_b32 v9, 2, v2")
        e(f"v_lshl_add_u32 v10, v1, 2, v9")
        e(f"v_and_b32 v5, 7, v10")
        e(f"v_lshlrev_b32 v10, 8, v10")
        e(f"s_add_u32 s{S_T2}, s{S_T2}, {LDS_V}")
        e(f"v_add_u32 v10, s{S_T2}, v10")
        e(f"v_and_b32 v6, 3, v2")
        e(f"v_lshl_add_u32 v10, v6, 3, v10")
        for dt in range(8):
            e(f"v_xor_b32 v6, {dt}, v5")
            e(f"v_lshl_add_u32 v{V_VA+dt}, v6, 5, v10")
        for i in range(64):
            e(f"v_mov_b32 v{V_OA+i}, 0")
        for i in range(64):
            e(f"v_accvgpr_write_b32 a{A_OB+i}, 0")
        e(f"s_mov_b32 s{S_THR}, 0x40004000")
        for i in range(16):
            e(f"v_mov_b32 v{V_LA+i}, 0")
        for i in range(4):
            e(f"v_mov_b32 v{V_ONE+i}, 0x3f803f80")
        e(f"s_mov_b32 s{S_C}, {f32bits(SCALE):#x}")
        e(f"s_mov_b32 s{S_C+1}, {f32bits(SCALE):#x}")
        e(f"s_lshl_b32 s{S_T1}, s{S_I}, 16")
        e(f"s_add_u32 s{S_T1}, s{S_T1}, 49152")
        e(f"s_lshl_b32 s{S_T2}, s{S_J}, 13")
        e(f"s_add_u32 s{S_T2}, s{S_T2}, s{S_T1}")
        e(f"s_sub_u32 s{S_T2}, s{S_T2}, s{S_WB}")
        for q in range(4):
            e(f"v_add_u32 v{4+q}, s{S_T2}, v{V_DK+q}")
        e(f"s_lshl_b32 s{S_T2}, s{S_J}, 14")
        e(f"s_sub_u32 s{S_T2}, s{S_T1}, s{S_T2}")
        e(f"s_add_u32 s{S_T2}, s{S_T2}, 8192")
        for ks in range(4):
            e(f"v_add_u32 v{48+ks}, s{S_T1}, v{V_KA+ks}")
            e(f"v_add_u32 v{52+ks}, s{S_T2}, v{V_KA+ks}")
        e(f"s_lshl_b32 s{S_T2}, s{S_J}, 13")
        e(f"s_sub_u32 s{S_T1}, {LDS_KT}, s{S_T2}")
        e(f"s_sub_u32 s{S_T2}, {LDS_VT-LDS_V}, s{S_T2}")
        for ks in range(4):
            e(f"v_add_u32 v{ks}, s{S_T1}, v{V_KA+ks}")
        for dt in range(8):
            e(f"v_add_u32 v{VTA+dt}, s{S_T2}, v{V_VA+dt}")
        order = cfg.get("order", "mid")
        pend = [dV0, dKT, dK1, dVT, dV1]
        nv = 8
        nearly = {"late": 0, "mid": 3, "early": 5}[order]
        for lines in pend[:nearly]:
            self.emit_all(lines)
            nv += sum(1 for x in lines if x.startswith("buffer_load"))
        pend = pend[nearly:]
        self.stamp()
        for k in range(8):
            e(f"s_waitcnt vmcnt({nv + 7 - k})")
            if k == 0:
                self.stamp()
            if k % 2 == 1 and pend:
                lines = pend.pop(0)
                self.emit_all(lines)
                nv += sum(1 for x in lines if x.startswith("buffer_load"))
            for x in range(4):
                src = 128 + 4 * k + x
                t = 176 + 2 * x
                e(f"v_lshlrev_b32 v{t}, 16, v{src}")
                e(f"v_and_b32 v{t+1}, 0xffff0000, v{src}")
            for x in range(4):
                t = 176 + 2 * x
                e(f"v_pk_mul_f32 v[{t}:{t+1}], v[{t}:{t+1}], s[{S_C}:{S_C+1}]")
            o = 184 + 4 * (k % 2)
            for x in range(4):
                t = 176 + 2 * x
                e(f"v_cvt_pk_bf16_f32 v{o+x}, v{t}, v{t+1}")
            e(f"ds_write_b128 v{4+k%4}, v[{o}:{o+3}] offset:{(k>>2)*4096+(k&3)*1024}")
        for lines in pend:
            self.emit_all(lines)
        e(f"s_waitcnt vmcnt(16) lgkmcnt(0)")
        e("s_barrier")
        self.stamp()
        for ks in range(4):
            e(f"ds_read_b128 a[{A_QA+4*ks}:{A_QA+4*ks+3}], v{48+ks}")
            e(self.k_read(ks, 0))
        for ks in range(4):
            e(self.k_read(4 + ks, 0))
        for ks in range(4):
            e(f"ds_read_b128 a[{A_QA+16+4*ks}:{A_QA+16+4*ks+3}], v{48+ks} offset:4096")
        for qb in range(2):
            for ks in range(4):
                e(f"ds_read_b128 a[{A_QB+16*qb+4*ks}:{A_QB+16*qb+4*ks+3}], v{52+ks} offset:{qb*4096}")
        e(f"s_mov_b32 s{S_T0}, {f32bits(-1e9*1.4426950408889634):#x}")
        bias1 = []
        for g in range(4):
            for k in range(2):
                src = 16 + 2 * g + k
                d0 = V_ST + 4 * g + 2 * k
                bias1.append(f"v_lshlrev_b32 v{d0}, 16, v{src}")
                bias1.append(f"v_and_b32 v{d0+1}, 0xffff0000, v{src}")
        for i in range(16):
            bias1.append(f"v_sub_f32 v{V_ST+i}, 1.0, v{V_ST+i}")
        self.emit_all(bias1[:16])
        mf = self.qk_mfmas("A", cin="0") + self.qk_mfmas("B", cin="0")
        pre = {}
        for k in range(4):
            pre[k] = [f"s_waitcnt lgkmcnt({min(15, 24-2*(k+1))})"]
        for k in range(4):
            pre[4 + k] = [f"s_waitcnt lgkmcnt({min(15, 24-8-(k+1))})"]
        for k in range(4):
            pre[8 + k] = [f"s_waitcnt lgkmcnt({24-12-(k+1)})"]
        pre[16] = ["s_waitcnt lgkmcnt(4)"]
        pre[24] = ["s_waitcnt lgkmcnt(0)"]
        gaps = {}

        def put(g, s):
            gaps.setdefault(g, []).append(s)
        for g, s in spread(bias1[16:], 0, 7):
            put(g, s)
        for g, s in spread(self.dma_k_stage(2), 8, 17):
            put(g, s)
        tA = self.blk("A")["IT"]
        bias2 = [f"v_fma_f32 v{V_ST+i}, v{V_ST+i}, s{S_T0}, v{tA+6+i//8}" for i in range(16)]
        for g, s in spread(self.ism_part1("A") + bias2, 19, 31):
            put(g, s)
        self.emit_sched(mf, gaps, pre)
        e(f"s_waitcnt vmcnt(8)")
        e("s_barrier")
        self.stamp()
        for i in range(8):
            e(self.k_read(i, 0, dst=A_KT, addr=0, off=0))
        for dt in range(8):
            self.emit_all(self.v_reads(dt, 0))
        p2a = self.ism_part2("A")
        self.emit_all(p2a[:16])
        mf = self.qk_mfmas("A", kf=A_KT, cin="self", dst=V_ST) + self.pv_mfmas("A")
        pre = {0: ["s_waitcnt lgkmcnt(15)"], 16: ["s_waitcnt lgkmcnt(15)", "s_nop 1"]}
        gaps = {}
        rd = [self.k_read(i, 1, dst=A_KT) for i in range(8)]
        for g, s in spread(p2a[16:], 0, 15):
            put(g, s)
        dm = self.dma_v_stage(2) + self.dma_k_stage(3) + self.dma_k_stage(0) + self.dma_v_stage(3)
        rdv = []
        for dt in range(8):
            rdv += self.v_reads(dt, 0, dst=A_VT, addr=VTA, off=0)
        for g, s in spread(self.ism_part1("B"), 16, 23):
            put(g, s)
        smt = self.sm_stream("A", src=V_ST)
        h0 = [s for g, s in smt if g < 17]
        h1 = [s for g, s in smt if g >= 17]
        h0n = []
        for k, s in enumerate(h0):
            h0n.append(s)
            if s.startswith("v_exp") and k + 1 < len(h0) and h0[k + 1].startswith("v_cvt"):
                h0n.append("s_nop 0")
        for g, s in spread(h0n, 24, 33):
            put(g, s)
        for k, s in enumerate(h1):
            put(34, s)
            if s.startswith("v_exp") and k + 1 < len(h1) and h1[k + 1].startswith("v_cvt"):
                put(34, "s_nop 0")
        for g, s in spread(rdv, 0, 15):
            put(g, s)
        for g, s in spread(rd, 16, 31):
            put(g, s)
        for g, s in spread(dm, 0, 33):
            put(g, s)
        self.emit_sched(mf, gaps, pre)
        e("s_waitcnt lgkmcnt(0)")
        self.stamp()
        carry = spread(self.ism_part2("B"), 0, 29)
        carry = self.iteration(0, carry, vm=16, pva_vf=A_VT, first=True)
        e(f"s_mov_b32 s{S_LOOP}, 7")
        self.label("L_loop")
        t = carry
        for m in (1, 2, 3, 4):
            le = None
            if m == 4:
                le = [f"s_sub_u32 s{S_LOOP}, s{S_LOOP}, 1", f"s_cmp_lg_u32 s{S_LOOP}, 0", "s_cbranch_scc1 L_loop"]
            t = self.iteration(m, t, loop_end=le)
        self.stamp()
        t = self.iteration(29, t, dma=False, vm=16)
        t = self.iteration(30, t, dma=False, vm=0, kread=False, bar=cfg["lastbar"])
        self.stamp()
        self.c("---- final PV")
        ds = [(g, s) for g, s in t if s.startswith("ds_")]
        sm = [(g, s) for g, s in t if not s.startswith("ds_")]
        self.emit_all([s for g, s in ds])
        e(f"v_lshlrev_b32 v32, 4, v{ln}")
        e(f"s_lshl_b32 s{S_T0}, s{S_W}, 14")
        e(f"s_xor_b32 s{S_T1}, s{S_T0}, 16384")
        e(f"v_add_u32 v33, s{S_T0}, v32")
        e(f"v_add_u32 v34, s{S_T1}, v32")
        e(f"s_lshl_b32 s{S_T0}, s{S_W}, 10")
        e(f"s_add_u32 s{S_T0}, s{S_T0}, {LDS_ML}")
        e(f"s_xor_b32 s{S_T1}, s{S_T0}, 1024")
        e(f"v_add_u32 v35, s{S_T0}, v32")
        e(f"v_add_u32 v36, s{S_T1}, v32")
        pa, pb = self.pv_mfmas("A", A_VT), self.pv_mfmas("B", A_VT)
        mf = pa[:9] + pb + pa[9:]
        gaps = {}
        sml = []
        for k, (g, s) in enumerate(sm):
            sml.append(s)
            if s.startswith("v_exp") and k + 1 < len(sm) and sm[k + 1][1].startswith("v_cvt"):
                sml.append("s_nop 0")
        for g, s in spread(sml, 0, 8):
            put(g, s)
        put(9, f"s_lshl_b32 s{S_T2}, s{S_W}, 14")
        put(9, f"s_add_u32 s{S_T2}, s{S_T2}, {LDS_V}")
        put(9, f"v_and_b32 v42, 15, v{ln}")
        put(10, f"v_lshrrev_b32 v43, 4, v{ln}")
        put(10, f"v_mul_u32_u24 v40, 272, v42")
        put(11, f"v_and_b32 v44, 1, v43")
        put(11, f"v_lshl_add_u32 v40, v44, 5, v40")
        put(30, f"v_lshrrev_b32 v44, 1, v43")
        put(31, f"v_lshl_add_u32 v40, v44, 4, v40")
        put(31, f"v_add_u32 v40, s{S_T2}, v40")
        put(32, f"v_mul_u32_u24 v41, 272, v43")
        put(32, f"v_lshl_add_u32 v41, v42, 4, v41")
        put(33, f"v_add_u32 v41, s{S_T2}, v41")
        put(20, f"v_mov_b32 v8, v{V_MB}")
        put(20, f"v_mov_b32 v9, v{V_MB+1}")
        put(21, f"v_mov_b32 v10, v{V_LB}")
        for r4 in range(16):
            mi = 9 + 9 * (r4 // 8) + r4 % 8
            put(mi + 3, f"ds_write_b128 v33, a[{A_OB+4*r4}:{A_OB+4*r4+3}] offset:{r4*1024}")
        put(29, f"v_mov_b32 v11, v{V_LB+4}")
        put(30, f"ds_write_b128 v35, v[8:11]")
        self.emit_sched(mf, gaps, pre={0: ["s_waitcnt lgkmcnt(0)"], 9: ["s_nop 1"]})
        e("s_waitcnt lgkmcnt(0)")
        e("s_barrier")
        self.stamp()
        e(f"ds_read_b128 v[8:11], v36")
        for r4 in range(16):
            e(f"ds_read_b128 v[{128+4*r4}:{128+4*r4+3}], v34 offset:{r4*1024}")
        e("s_waitcnt lgkmcnt(15)")
        for qb in range(2):
            e(f"v_max_f32 v{12+qb}, v{V_MA+qb}, v{8+qb}")
        for qb in range(2):
            e(f"v_sub_f32 v{24+qb}, v{V_MA+qb}, v{12+qb}")
            e(f"v_sub_f32 v{26+qb}, v{8+qb}, v{12+qb}")
        for qb in range(2):
            e(f"v_exp_f32 v{24+qb}, v{24+qb}")
            e(f"v_exp_f32 v{26+qb}, v{26+qb}")
        e("s_nop 0")
        for qb in range(2):
            e(f"v_mul_f32 v{28+qb}, v{V_LA+4*qb}, v{24+qb}")
        for qb in range(2):
            e(f"v_fma_f32 v{28+qb}, v{10+qb}, v{26+qb}, v{28+qb}")
        for qb in range(2):
            e(f"v_rcp_f32 v{28+qb}, v{28+qb}")
        e("s_nop 0")
        for qb in range(2):
            e(f"v_mul_f32 v{16+4*qb}, v{24+qb}, v{28+qb}")
            e(f"v_mul_f32 v{18+4*qb}, v{26+qb}, v{28+qb}")
        for qb in range(2):
            e(f"v_mov_b32 v{17+4*qb}, v{16+4*qb}")
            e(f"v_mov_b32 v{19+4*qb}, v{18+4*qb}")
        stf = cfg.get("stf", "")
        e(f"s_lshl_b32 s{S_T0}, s{S_W}, 13")
        e(f"s_add_u32 s{S_T1}, s{S_T0}, 4096")
        log = ["ml"] + [f"o{r}" for r in range(16)]
        def wait(tag):
            n = len(log) - 1 - log.index(tag)
            e(f"s_waitcnt lgkmcnt({min(15, n)})")
        for qb in range(2):
            fa, fb = 16 + 4 * qb, 18 + 4 * qb
            for dp in range(4):
                gi = 4 * qb + dp
                base = 32 * qb + 8 * dp
                r4 = base // 4
                wait(f"o{r4+1}")
                pk = 48 + 4 * (gi % 4)
                for k in range(0, 8, 2):
                    o = 128 + base + k
                    e(f"v_pk_mul_f32 v[{o}:{o+1}], v[{o}:{o+1}], v[{fb}:{fb+1}]")
                for k in range(0, 8, 2):
                    o = 128 + base + k
                    oa = V_OA + base + k
                    e(f"v_pk_fma_f32 v[{o}:{o+1}], v[{oa}:{oa+1}], v[{fa}:{fa+1}], v[{o}:{o+1}]")
                for k in range(4):
                    o = 128 + base + 2 * k
                    e(f"v_cvt_pk_bf16_f32 v{pk+k}, v{o}, v{o+1}")
                if qb == 1 and dp >= 2:
                    for k in (2 * (dp - 2), 2 * (dp - 2) + 1):
                        wait(f"r{k}")
                        e(f"buffer_store_dwordx4 v[{64+4*k}:{67+4*k}], v32, s[{S_O}:{S_O+3}], s{S_T0} offen offset:{k*1024}{stf}")
                else:
                    e("s_nop 1")
                e(f"v_permlane16_swap_b32 v{pk}, v{pk+2}")
                e(f"v_permlane16_swap_b32 v{pk+1}, v{pk+3}")
                e("s_nop 1")
                e(f"ds_write_b128 v40, v[{pk}:{pk+3}] offset:{qb*16*272+dp*64}")
                log.append(f"w{gi}")
                if qb == 1 and dp == 0:
                    for k in range(4):
                        e(f"ds_read_b128 v[{64+4*k}:{67+4*k}], v41 offset:{k*4*272}")
                        log.append(f"r{k}")
        for k in range(4, 8):
            e(f"ds_read_b128 v[{64+4*k}:{67+4*k}], v41 offset:{k*4*272}")
            log.append(f"r{k}")
        for k in range(4, 8):
            wait(f"r{k}")
            e(f"buffer_store_dwordx4 v[{64+4*k}:{67+4*k}], v32, s[{S_O}:{S_O+3}], s{S_T1} offen offset:{(k%4)*1024}{stf}")
        if self.stamps:
            self.stamp()
            e("s_waitcnt vmcnt(0)")
            self.stamp()
            e("s_memrealtime s[100:101]")
            e("s_waitcnt lgkmcnt(0)")
            if 'dbgst' in self.exp:
                e("s_cmp_lg_u32 s2, 100")
                e("s_cbranch_scc1 L_done")
                e(f"s_cmp_lg_u32 s{S_W}, 0")
                e("s_cbranch_scc1 L_done")
                e("s_mov_b32 s8, s18"); e("s_mov_b32 s9, s19"); e("s_mov_b32 s10, 256"); e("s_mov_b32 s11, 0x00020000")
                e("v_mov_b32 v4, 0")
                e(f"v_cmp_eq_u32 vcc, 0, v{ln}")
                e("s_and_saveexec_b64 s[12:13], vcc")
                for k in range(1, self.nstamp):
                    e(f"s_sub_u32 s3, s{72+2*k}, s72")
                    e("v_mov_b32 v6, s3")
                    e(f"buffer_store_dword v6, v4, s[8:11], 0 offen offset:{4*k}")
                e("s_sub_u32 s3, s100, s98")
                e("v_mov_b32 v6, s3")
                e(f"buffer_store_dword v6, v4, s[8:11], 0 offen offset:0")
            else:
                e("s_mov_b32 s8, s18"); e("s_mov_b32 s9, s19"); e("s_mov_b32 s10, 0x1000000"); e("s_mov_b32 s11, 0x00020000")
                e("s_lshl_b32 s3, s2, 2")
                e(f"s_add_u32 s3, s3, s{S_W}")
                e("s_lshl_b32 s3, s3, 7")
                e("v_mov_b32 v4, s3")
                e(f"v_cmp_eq_u32 vcc, 0, v{ln}")
                e("s_and_saveexec_b64 s[12:13], vcc")
                for k in range(self.nstamp):
                    e(f"s_sub_u32 s3, s{72+2*k}, s72")
                    e("v_mov_b32 v6, s3")
                    e(f"buffer_store_dword v6, v4, s[8:11], 0 offen offset:{4*k}")
                e("v_mov_b32 v6, s100")
                e(f"buffer_store_dword v6, v4, s[8:11], 0 offen offset:{4*16}")
                e("v_mov_b32 v6, s98")
                e(f"buffer_store_dword v6, v4, s[8:11], 0 offen offset:{4*17}")
        self.label("L_done")
        e("s_endpgm")
        for u, X, src in self.stubs:
            self.label(f"L_stub{u}")
            if src is not None:
                S = self.blk(X)["S"]
                for i in range(16):
                    e(f"v_mov_b32 v{S+i}, v{src+i}")
            e(f"s_call_b64 s[{S_RET}:{S_RET+1}], L_slow{X}")
            e(f"s_branch L_back{u}")
        self.slow_path("A")
        self.slow_path("B")
        self.label("L_codeend")
        L.append('.section .rodata,"a"')
        L.append(".p2align 6")
        L.append(f".amdhsa_kernel {KNAME}")
        L.append("  .amdhsa_next_free_vgpr 512")
        L.append("  .amdhsa_next_free_sgpr 102")
        L.append("  .amdhsa_accum_offset 256")
        L.append("  .amdhsa_group_segment_fixed_size 0")
        L.append("  .amdhsa_kernarg_size 72")
        L.append("  .amdhsa_user_sgpr_count 2")
        L.append("  .amdhsa_user_sgpr_kernarg_segment_ptr 1")
        L.append("  .amdhsa_system_sgpr_workgroup_id_x 1")
        L.append(".end_amdhsa_kernel")
        return "\n".join(L) + "\n"


if __name__ == "__main__":
    ap = argparse.ArgumentParser()
    ap.add_argument("-o", default="k9.s")
    ap.add_argument("--no-nt", action="store_true")
    ap.add_argument("--stamps", action="store_true")
    ap.add_argument("--no-pf", action="store_true")
    ap.add_argument("--exp", default="")
    ap.add_argument("--cfg", default="")
    a = ap.parse_args()
    cfg = eval("dict(" + a.cfg + ")") if a.cfg else None
    g = Gen(nt=not a.no_nt, stamps=a.stamps, code_pf=not a.no_pf, exp=a.exp, cfg=cfg)
    open(a.o, "w").write(g.build())
```

```python
import sys, struct, argparse

KNAME = "standalone__tree_speculative_verify_tree_attention_over_candidate_token_tree__sampling_kernel"
HEADER = open("standalone__tree_speculative_verify_tree_attention_over_candidate_token_tree__sampling.s.ref").read().split("; Override launch")[0]


def f32bits(x):
    return struct.unpack("<I", struct.pack("<f", x))[0]


V_OA = 64
V_SA, V_SB = 128, 144
V_CA, V_CB = 160, 168
V_PA, V_PB = 176, 184
V_EA, V_EB = 192, 196
V_LA, V_LB = 200, 208
V_MA, V_MB = 216, 218
V_XA, V_XB = 220, 221
V_LANE = 222
V_KA = 224
V_VA = 228
V_DK = 236
V_DV = 240
V_ONE = 244
V_SL = 0
V_ST = 32
V_IT = 48
VTA = 248
A_OB = 0
A_QA, A_QB = 64, 96
A_KF = 128
A_VF = 160
A_VT = 192
A_KT = 224
S_K, S_V, S_Q, S_KT, S_VT, S_M, S_O = 20, 24, 28, 32, 36, 40, 44
S_W, S_I, S_J = 48, 49, 50
S_KOFF, S_VOFF = 51, 52
S_WB = 53
S_LOOP = 54
S_THR = 55
S_T4 = 59
S_PFO = 56
S_PF = 28
V_PF = 242
V_PFD = 243
S_RET = 60
S_T0, S_T1, S_T2, S_T3 = 62, 63, 64, 65
S_BH, S_QH = 66, 67
S_C = 68
S_PC = 70

LDS_V = 65536
LDS_KT = 131072
LDS_VT = 139264
LDS_ML = 147456
BIAS = 10.0
SCALE = (128 ** -0.5) * 1.4426950408889634
NG = 68
G_PVA, G_QKB, G_PVB = 16, 34, 50


def spread(ops, g0, g1):
    n = len(ops)
    k = g1 - g0 + 1
    return [(g0 + (i * k) // n, op) for i, op in enumerate(ops)]


class Gen:
    def __init__(self, nt=True, code_pf=True, stamps=False, exp="", cfg=None):
        self.L = []
        self.nt = " nt" if nt else ""
        self.code_pf = code_pf
        self.uid = 0
        self.stubs = []
        self.stamps = stamps
        self.nstamp = 0
        self.exp = exp
        self.cfg = dict(sma=22, smb=56, bar=5, stf=" nt",
                        kread=[7, 9, 11, 15, 17, 19, 21, 23],
                        vread=[29, 33, 35, 37, 41, 43, 45, 49, 51, 53, 55, 57, 59, 61, 61, 63],
                        dma=[13, 20, 27, 31, 39, 47, 54, 65], lastbar=27, pf=0, pfgap=67, pfstride=64, pfpol=" nt")
        if cfg:
            self.cfg.update(cfg)

    def e(self, s):
        self.L.append("  " + s)

    def label(self, s):
        self.L.append(s + ":")

    def c(self, s):
        self.L.append("  ; " + s)

    def stamp(self):
        if self.stamps:
            k = self.nstamp
            self.nstamp += 1
            assert k < 13
            self.e(f"s_memtime s[{72+2*k}:{73+2*k}]")

    def blk(self, X):
        if X == "A":
            return dict(S=V_SA, C=V_CA, P=V_PA, E=V_EA, L=V_LA, M=V_MA, Q=A_QA, IT=V_IT, X=V_XA)
        return dict(S=V_SB, C=V_CB, P=V_PB, E=V_EB, L=V_LB, M=V_MB, Q=A_QB, IT=V_IT + 8, X=V_XB)

    def qk_mfmas(self, X, kf=A_KF, cin=None, dst=None):
        r = self.blk(X)
        S = r["S"] if dst is None else dst
        Q = r["Q"]
        out = []
        for qb in range(2):
            for kt in range(2):
                s = S + 8 * qb + 4 * kt
                for ks in range(4):
                    if ks == 0 and cin != "self":
                        c = f"v[{r['C']+4*qb}:{r['C']+4*qb+3}]" if cin is None else cin
                    else:
                        c = f"v[{s}:{s+3}]"
                    k = kf + 4 * (4 * kt + ks)
                    q = Q + 4 * (4 * qb + ks)
                    out.append(f"v_mfma_f32_16x16x32_bf16 v[{s}:{s+3}], a[{k}:{k+3}], a[{q}:{q+3}], {c}")
        return out

    def pv_mfmas(self, X, vf=A_VF):
        r = self.blk(X)
        P, Lr = r["P"], r["L"]
        out = []
        for qb in range(2):
            grp = []
            for dt in range(8):
                f = vf + 4 * dt
                ob = 32 * qb + 4 * dt
                if X == "A":
                    o = f"v[{V_OA+ob}:{V_OA+ob+3}]"
                else:
                    o = f"a[{A_OB+ob}:{A_OB+ob+3}]"
                grp.append(f"v_mfma_f32_16x16x32_bf16 {o}, a[{f}:{f+3}], v[{P+4*qb}:{P+4*qb+3}], {o}")
            l = f"v[{Lr+4*qb}:{Lr+4*qb+3}]"
            grp.append(f"v_mfma_f32_16x16x32_bf16 {l}, v[{V_ONE}:{V_ONE+3}], v[{P+4*qb}:{P+4*qb+3}], {l}")
            out += grp
        return out

    def sm_stream(self, X, src=None):
        r = self.blk(X)
        S, P, E, XX = r["S"], r["P"], r["E"], r["X"]
        if src is not None:
            S = src
        out = []
        for e in range(16):
            out.append((2 * e, f"v_exp_f32 v{E+e%4}, v{S+e}"))
            if e % 2 == 1:
                k = e // 2
                out.append((2 * e + 1, f"v_cvt_pk_bf16_f32 v{P+k}, v{E+(e-1)%4}, v{E+e%4}"))
                if k == 3:
                    out.append((2 * e - 1, f"v_or3_b32 v{XX}, v{P}, v{P+1}, v{P+2}"))
                if k == 5:
                    out.append((2 * e - 1, f"v_or3_b32 v{XX}, v{XX}, v{P+3}, v{P+4}"))
                if k == 7:
                    out.append((2 * e - 1, f"v_or3_b32 v{XX}, v{XX}, v{P+5}, v{P+6}"))
        out.append((33, f"v_bitop3_b32 v{XX}, v{XX}, v{P+7}, s{S_THR} bitop3:0xa8"))
        out.append((35, f"v_cmp_ne_u32 vcc, 0, v{XX}"))
        self.uid += 1
        u = self.uid
        self.stubs.append((u, X, src))
        out.append((37, f"s_cbranch_vccnz L_stub{u}\nL_back{u}:"))
        out.sort(key=lambda x: x[0])
        return out

    def rowmax(self, S, t, dst, floor0=False):
        ops = [
            f"v_max3_f32 v{t}, v{S}, v{S+1}, v{S+2}",
            f"v_max3_f32 v{t+1}, v{S+3}, v{S+4}, v{S+5}",
            f"v_max3_f32 v{t}, v{t}, v{S+6}, v{S+7}",
            f"v_max_f32 v{t}, v{t}, v{t+1}",
            f"v_mov_b32 v{t+1}, v{t}",
            "s_nop 1",
            f"v_permlane16_swap_b32 v{t}, v{t+1}",
            "s_nop 1",
            f"v_max_f32 v{t}, v{t}, v{t+1}",
            f"v_mov_b32 v{t+1}, v{t}",
            "s_nop 1",
            f"v_permlane32_swap_b32 v{t}, v{t+1}",
            "s_nop 1",
        ]
        ops.append(f"v_max_f32 v{t}, v{t}, v{t+1}")
        ops.append(f"v_add_f32 v{dst}, {f32bits(BIAS):#x}, v{t}")
        if floor0:
            ops.append(f"v_max_f32 v{dst}, 0, v{dst}")
        return ops

    def ism_part1(self, X):
        r = self.blk(X)
        S, M, t = r["S"], r["M"], r["IT"]
        a = self.rowmax(S, t, M)
        b = self.rowmax(S + 8, t + 3, M + 1)
        ops = []
        for x, y in zip(a, b):
            if x.startswith("s_nop"):
                ops.append("s_nop 0")
            else:
                ops += [x, y]
        ops.append(f"v_sub_f32 v{t+6}, 0, v{M}")
        ops.append(f"v_sub_f32 v{t+7}, 0, v{M+1}")
        return ops

    def ism_part2(self, X):
        r = self.blk(X)
        S, C, P, E, M, t = r["S"], r["C"], r["P"], r["E"], r["M"], r["IT"]
        ops = []
        for i in range(16):
            ops.append(f"v_sub_f32 v{S+i}, v{S+i}, v{M+i//8}")
        ex = []
        for e in range(17):
            if e < 16:
                ex.append(f"v_exp_f32 v{E+e%4}, v{S+e}")
            if e < 8:
                ex.append(f"v_mov_b32 v{C+e}, v{t+6+e//4}")
            elif e == 16:
                ex.append("s_nop 0")
            p = e - 1
            if p >= 0 and p % 2 == 1:
                ex.append(f"v_cvt_pk_bf16_f32 v{P+p//2}, v{E+(p-1)%4}, v{E+p%4}")
        return ops + ex

    def emit_line(self, s):
        if "\n" in s:
            for x in s.split("\n"):
                self.emit_line(x)
            return
        if s.endswith(":"):
            self.label(s[:-1])
        else:
            self.e(s)

    def k_read(self, idx, slot, dst=A_KF, addr=V_KA, off=None):
        kt, ks = idx // 4, idx % 4
        o = (slot * 16384 if off is None else off) + kt * 4096
        return f"ds_read_b128 a[{dst+4*idx}:{dst+4*idx+3}], v{addr+ks} offset:{o}"

    def v_reads(self, dt, slot, dst=A_VF, addr=V_VA, off=None):
        o = slot * 16384 if off is None else off
        f = dst + 4 * dt
        return [f"ds_read_b64_tr_b16 a[{f}:{f+1}], v{addr+dt} offset:{o}",
                f"ds_read_b64_tr_b16 a[{f+2}:{f+3}], v{addr+dt} offset:{o+4096}"]

    def dma_k(self, q, soff=S_KOFF, srd=S_K, v=None):
        vv = V_DK + q if v is None else v
        return f"buffer_load_dwordx4 v{vv}, s[{srd}:{srd+3}], s{soff} offen offset:{q*1024}{self.nt} lds"

    def dma_v(self, q, soff=S_VOFF, srd=S_V, v=None):
        vv = V_DV + (q & 1) if v is None else v
        return f"buffer_load_dwordx4 v{vv}, s[{srd}:{srd+3}], s{soff} offen offset:{q*1024}{self.nt} lds"

    def pf_load(self):
        return f"buffer_load_dword v{V_PFD}, v{V_PF}, s[{S_PF}:{S_PF+3}], s{S_PFO} offen{self.cfg['pfpol']}"

    def dma_k_stage(self, slot):
        return ([f"s_add_u32 m0, s{S_WB}, {slot*16384}", "s_nop 0"] + [self.dma_k(q) for q in range(4)]
                + [f"s_add_u32 s{S_KOFF}, s{S_KOFF}, 16384"])

    def dma_v_stage(self, slot):
        return ([f"s_add_u32 m0, s{S_WB}, {LDS_V+slot*16384}", "s_nop 0"] + [self.dma_v(q) for q in range(4)]
                + [f"s_add_u32 s{S_VOFF}, s{S_VOFF}, 16384"])

    def emit_all(self, lines):
        for s in lines:
            self.emit_line(s)

    def emit_sched(self, mfmas, gaps, pre=None):
        pre = pre or {}
        n = len(mfmas)
        for k in range(n):
            for s in pre.get(k, []):
                self.emit_line(s)
            self.e(mfmas[k])
            for s in gaps.get(k, []):
                self.emit_line(s)
        for k in sorted(g for g in gaps if g >= n):
            for s in gaps[k]:
                self.emit_line(s)

    def iteration(self, m, carry, dma=True, vm=16, pva_vf=None, kread=True, loop_end=None, bar=None, first=False):
        cfg = self.cfg
        mm = m % 4
        KB, VB = (A_KF, A_KT), (A_VF, A_VT)
        self.c(f"---- iteration {m} (mod 4 = {mm})")
        items = []

        def put(g, s, pri=None):
            if 'novalu' in self.exp and s.startswith('v_'):
                return
            if 'nods' in self.exp and s.startswith('ds_'):
                return
            if pri is None:
                if s.startswith("v_") or s.startswith("s_nop"):
                    pri = 6
                elif s.startswith("ds_") or s.startswith("buffer_"):
                    pri = 3
                else:
                    pri = 2
            items.append((g, pri, len(items), s))

        kf, vf = KB[(m + 1) % 2], VB[m % 2]
        mf = (self.qk_mfmas("A", kf) + self.pv_mfmas("A", vf if pva_vf is None else pva_vf)
              + self.qk_mfmas("B", kf) + self.pv_mfmas("B", vf))
        assert len(mf) == NG
        for g, s in carry:
            put(g, s)
        for g, s in self.sm_stream("A"):
            put(cfg["sma"] + g, s)
        for g, s in self.sm_stream("B"):
            put(cfg["smb"] + g, s)
        bg = cfg["bar"] if bar is None else bar
        if dma and 'nodma' not in self.exp:
            gk, gv = cfg["dma"][:4], cfg["dma"][4:]
            assert gk[0] - 1 > bg and gv[0] - 1 >= gk[3] and gv[3] + 1 < NG
            put(gk[0] - 1, f"s_add_u32 m0, s{S_WB}, {((mm+1)%4)*16384}")
            for q, g in enumerate(gk):
                put(g, self.dma_k(q))
            put(gv[0] - 1, f"s_add_u32 m0, s{S_WB}, {LDS_V+mm*16384}", 4 if gv[0] - 1 == gk[3] else None)
            put(gk[3] + 1, f"s_add_u32 s{S_KOFF}, s{S_KOFF}, 16384")
            for q, g in enumerate(gv):
                put(g, self.dma_v(q))
            put(gv[3] + 1, f"s_add_u32 s{S_VOFF}, s{S_VOFF}, 16384")
            if cfg["pf"]:
                assert cfg["pfgap"] > gv[3]
                put(cfg["pfgap"], self.pf_load())
                put(cfg["pfgap"], f"s_add_u32 s{S_PFO}, s{S_PFO}, 16384", 4)
        put(bg, f"s_waitcnt vmcnt({vm}) lgkmcnt(0)", 0)
        if 'nobar' not in self.exp:
            put(bg, "s_barrier", 1)
        if kread:
            for i in range(8):
                assert bg < cfg["kread"][i] < NG
                put(cfg["kread"][i], self.k_read(i, (mm + 2) % 4, dst=KB[m % 2]))
        vr = []
        for dt in range(8):
            vr += self.v_reads(dt, (mm + 1) % 4, dst=VB[(m + 1) % 2])
        for k, s in enumerate(vr):
            g = cfg["vread"][k]
            assert bg < g < NG and g >= 26 + k // 2
            put(g, s)
        if loop_end:
            put(NG - 3, loop_end[0])
            put(NG - 1, loop_end[1], 5)
            put(NG - 1, loop_end[2], 9)
        items.sort()
        gaps = {}
        nxt = []
        for g, pri, _, s in items:
            if g >= NG:
                nxt.append((g - NG, s))
            else:
                gaps.setdefault(g, []).append(s)
        pre = {}
        if not first:
            assert max(cfg["kread"]) < min(cfg["vread"])
            pre[0] = ["s_waitcnt lgkmcnt(15)"]
            if bg >= 16:
                pre[16] = ["s_waitcnt lgkmcnt(0)"]
        self.emit_sched(mf, gaps, pre)
        return nxt

    def slow_path(self, X):
        r = self.blk(X)
        S, C, P, Lr, M = r["S"], r["C"], r["P"], r["L"], r["M"]
        t = V_SL
        self.label(f"L_slow{X}")
        e = self.e
        for qb in range(2):
            d = t + 3
            f = t + 4
            self.emit_all(self.rowmax(S + 8 * qb, t, d, floor0=True))
            e(f"v_add_f32 v{M+qb}, v{M+qb}, v{d}")
            e(f"v_exp_f32 v{f}, -v{d}")
            e(f"v_sub_f32 v{t+5}, 0, v{M+qb}")
            for i in range(4):
                e(f"v_mov_b32 v{C+4*qb+i}, v{t+5}")
            e(f"v_mul_f32 v{Lr+4*qb}, v{Lr+4*qb}, v{f}")
            if X == "A":
                for i in range(32):
                    o = V_OA + 32 * qb + i
                    e(f"v_mul_f32 v{o}, v{o}, v{f}")
            else:
                for i in range(0, 32, 4):
                    for k in range(4):
                        e(f"v_accvgpr_read_b32 v{t+8+k}, a{A_OB+32*qb+i+k}")
                    for k in range(4):
                        e(f"v_mul_f32 v{t+8+k}, v{t+8+k}, v{f}")
                    for k in range(4):
                        e(f"v_accvgpr_write_b32 a{A_OB+32*qb+i+k}, v{t+8+k}")
            for i in range(0, 8, 4):
                for k in range(4):
                    e(f"v_sub_f32 v{t+8+k}, v{S+8*qb+i+k}, v{d}")
                for k in range(4):
                    e(f"v_exp_f32 v{t+8+k}, v{t+8+k}")
                e("s_nop 0")
                e(f"v_cvt_pk_bf16_f32 v{P+4*qb+i//2}, v{t+8}, v{t+9}")
                e(f"v_cvt_pk_bf16_f32 v{P+4*qb+i//2+1}, v{t+10}, v{t+11}")
        e("s_nop 1")
        e(f"s_setpc_b64 s[{S_RET}:{S_RET+1}]")

    def srd(self, d, lo, hi, off, size):
        e = self.e
        e(f"s_add_u32 s{d}, s{lo}, s{off}")
        e(f"s_addc_u32 s{d+1}, s{hi}, 0")
        e(f"s_mov_b32 s{d+2}, {size}")
        e(f"s_mov_b32 s{d+3}, 0x00020000")

    def build(self):
        e = self.e
        L = self.L
        cfg = self.cfg
        L.append(HEADER.rstrip())
        L.append("; @launch grid=(256,1,1) block=(256,1,1) lds=163840")
        L.append('.amdgcn_target "amdgcn-amd-amdhsa--gfx950"')
        L.append(".text")
        L.append(f".globl {KNAME}")
        L.append(".p2align 8")
        L.append(f".type {KNAME},@function")
        self.label(KNAME)
        self.stamp()
        if self.stamps:
            e("s_memrealtime s[98:99]")
        e("s_cmp_ge_u32 s2, 256")
        e("s_cbranch_scc1 L_done")
        e("s_load_dwordx8 s[4:11], s[0:1], 0")
        e("s_load_dwordx4 s[12:15], s[0:1], 32")
        e("s_load_dwordx2 s[16:17], s[0:1], 48")
        if self.stamps:
            e(f"s_load_dwordx2 s[18:19], s[0:1], {56 if 'dbgst' in self.exp else 64}")
        e(f"s_getpc_b64 s[{S_PC}:{S_PC+1}]")
        self.label("L_pcbase")
        e(f"v_lshrrev_b32 v1, 6, v0")
        e(f"v_and_b32 v{V_LANE}, 63, v0")
        ln = V_LANE
        if self.code_pf:
            e(f"v_lshlrev_b32 v13, 4, v0")
            e("s_cmp_ge_u32 s2, 32")
            e("s_cbranch_scc1 L_nopf")
            e("s_mov_b32 s3, L_codeend-L_pcbase-16")
            for k in range(6):
                e(f"v_min_u32 v12, s3, v13")
                e(f"global_load_dwordx4 v[24:27], v12, s[{S_PC}:{S_PC+1}]")
                e(f"v_add_u32 v13, 0x1000, v13")
            self.label("L_nopf")
        e("s_and_b32 s3, s2, 7")
        e(f"v_readfirstlane_b32 s{S_W}, v1")
        e(f"s_lshr_b32 s{S_BH}, s2, 4")
        e(f"s_lshl_b32 s{S_BH}, s{S_BH}, 3")
        e(f"s_add_u32 s{S_BH}, s{S_BH}, s3")
        if 'samebh' in self.exp:
            e(f"s_and_b32 s{S_BH}, s{S_BH}, 7")
        e(f"s_lshr_b32 s{S_QH}, s2, 3")
        e(f"s_and_b32 s{S_QH}, s{S_QH}, 1")
        e(f"s_lshr_b32 s{S_I}, s{S_W}, 1")
        e(f"s_and_b32 s{S_J}, s{S_W}, 1")
        e(f"s_lshl_b32 s{S_WB}, s{S_W}, 12")
        e(f"v_lshrrev_b32 v1, 4, v{ln}")
        e(f"v_and_b32 v2, 15, v{ln}")
        e(f"v_lshlrev_b32 v3, 8, v1")
        e(f"v_add_u32 v3, s{S_WB}, v3")
        for q in range(4):
            e(f"v_add_u32 v4, {4*q}, v1")
            e(f"v_xor_b32 v4, v4, v2")
            e(f"v_lshl_add_u32 v{V_DK+q}, v4, 4, v3")
        for q in range(2):
            e(f"v_add_u32 v4, {4*q}, v1")
            e(f"v_lshlrev_b32 v4, 1, v4")
            e(f"v_xor_b32 v4, v4, v2")
            e(f"v_lshl_add_u32 v{V_DV+q}, v4, 4, v3")
        e(f"v_lshlrev_b32 v7, 6, v2")
        e(f"v_lshl_add_u32 v7, v1, 3, v7")
        e(f"v_lshlrev_b32 v14, 4, v{ln}")
        e(f"s_lshl_b32 s{S_T0}, s{S_BH}, 16")
        e(f"s_lshl_b32 s{S_T1}, s{S_QH}, 15")
        e(f"s_add_u32 s{S_T0}, s{S_T0}, s{S_T1}")
        e(f"s_lshl_b32 s{S_T1}, s{S_BH}, 19")
        e(f"s_lshr_b32 s{S_T2}, s{S_BH}, 2")
        e(f"s_lshl_b32 s{S_T2}, s{S_T2}, 11")
        e(f"s_lshl_b32 s{S_T3}, s{S_W}, 13")
        e(f"s_mov_b32 s{S_KOFF}, 0")
        e(f"s_mov_b32 s{S_VOFF}, 0")
        e("s_waitcnt lgkmcnt(0)")
        self.stamp()
        self.srd(S_Q, 4, 5, S_T0, 32768)
        for k in range(4):
            e(f"buffer_load_dwordx4 v[{128+4*k}:{131+4*k}], v14, s[{S_Q}:{S_Q+3}], s{S_T3} offen offset:{k*1024}{self.nt}")
        e(f"s_add_u32 s{S_T3}, s{S_T3}, 4096")
        self.srd(S_K, 6, 7, S_T1, 524288)
        for k in range(4):
            e(f"buffer_load_dwordx4 v[{144+4*k}:{147+4*k}], v14, s[{S_Q}:{S_Q+3}], s{S_T3} offen offset:{k*1024}{self.nt}")
        self.emit_all(self.dma_k_stage(0))
        self.srd(S_M, 14, 15, S_T2, 2048)
        for qb in range(2):
            for kt in range(2):
                g = 2 * qb + kt
                e(f"buffer_load_dwordx2 v[{16+2*g}:{17+2*g}], v7, s[{S_M}:{S_M+3}], 0 offen offset:{qb*1024+kt*32}")
        self.srd(S_V, 8, 9, S_T1, 524288)
        e(f"s_lshl_b32 s{S_T1}, s{S_BH}, 13")
        self.srd(S_KT, 10, 11, S_T1, 8192)
        self.srd(S_VT, 12, 13, S_T1, 8192)
        self.srd(S_O, 16, 17, S_T0, 32768)
        e(f"s_lshl_b32 s{S_T4}, s{S_W}, 11")
        e(f"s_lshl_b32 s{S_T2}, s{S_J}, 3")
        e(f"v_lshlrev_b32 v8, 8, v1")
        e(f"v_add_u32 v8, s{S_T4}, v8")
        for q in range(2):
            e(f"v_add_u32 v9, s{S_T2}, v1")
            e(f"v_add_u32 v9, {4*q}, v9")
            e(f"v_xor_b32 v9, v9, v2")
            e(f"v_lshl_add_u32 v{(15,13)[q]}, v9, 4, v8")
            e(f"v_subrev_u32 v{(12,11)[q]}, s{S_T4}, v{V_DV+q}")
        e(f"s_mov_b32 s{S_T3}, 0")
        dV0 = self.dma_v_stage(0)
        dKT = [f"s_add_u32 m0, s{S_T4}, {LDS_KT}", "s_nop 0"] + [self.dma_k(q, soff=S_T3, srd=S_KT, v=(15, 13)[q]) for q in range(2)]
        dK1 = self.dma_k_stage(1)
        dVT = [f"s_add_u32 m0, s{S_T4}, {LDS_VT}", "s_nop 0"] + [self.dma_v(q, soff=S_T3, srd=S_VT, v=(12, 11)[q]) for q in range(2)]
        dV1 = self.dma_v_stage(1)
        e(f"s_lshl_b32 s{S_T2}, s{S_J}, 13")
        e(f"v_lshlrev_b32 v8, 8, v2")
        e(f"v_add_u32 v8, s{S_T2}, v8")
        for ks in range(4):
            e(f"v_add_u32 v10, {4*ks}, v1")
            e(f"v_xor_b32 v10, v10, v2")
            e(f"v_lshl_add_u32 v{V_KA+ks}, v10, 4, v8")
        e(f"v_lshrrev_b32 v9, 2, v2")
        e(f"v_lshl_add_u32 v10, v1, 2, v9")
        e(f"v_and_b32 v5, 7, v10")
        e(f"v_lshlrev_b32 v10, 8, v10")
        e(f"s_add_u32 s{S_T2}, s{S_T2}, {LDS_V}")
        e(f"v_add_u32 v10, s{S_T2}, v10")
        e(f"v_and_b32 v6, 3, v2")
        e(f"v_lshl_add_u32 v10, v6, 3, v10")
        for dt in range(8):
            e(f"v_xor_b32 v6, {dt}, v5")
            e(f"v_lshl_add_u32 v{V_VA+dt}, v6, 5, v10")
        for i in range(64):
            e(f"v_mov_b32 v{V_OA+i}, 0")
        for i in range(64):
            e(f"v_accvgpr_write_b32 a{A_OB+i}, 0")
        e(f"s_mov_b32 s{S_THR}, 0x40004000")
        for i in range(16):
            e(f"v_mov_b32 v{V_LA+i}, 0")
        for i in range(4):
            e(f"v_mov_b32 v{V_ONE+i}, 0x3f803f80")
        e(f"s_mov_b32 s{S_C}, {f32bits(SCALE):#x}")
        e(f"s_mov_b32 s{S_C+1}, {f32bits(SCALE):#x}")
        e(f"s_lshl_b32 s{S_T1}, s{S_I}, 16")
        e(f"s_add_u32 s{S_T1}, s{S_T1}, 49152")
        e(f"s_lshl_b32 s{S_T2}, s{S_J}, 13")
        e(f"s_add_u32 s{S_T2}, s{S_T2}, s{S_T1}")
        e(f"s_sub_u32 s{S_T2}, s{S_T2}, s{S_WB}")
        for q in range(4):
            e(f"v_add_u32 v{4+q}, s{S_T2}, v{V_DK+q}")
        e(f"s_lshl_b32 s{S_T2}, s{S_J}, 14")
        e(f"s_sub_u32 s{S_T2}, s{S_T1}, s{S_T2}")
        e(f"s_add_u32 s{S_T2}, s{S_T2}, 8192")
        for ks in range(4):
            e(f"v_add_u32 v{48+ks}, s{S_T1}, v{V_KA+ks}")
            e(f"v_add_u32 v{52+ks}, s{S_T2}, v{V_KA+ks}")
        e(f"s_lshl_b32 s{S_T2}, s{S_J}, 13")
        e(f"s_sub_u32 s{S_T1}, {LDS_KT}, s{S_T2}")
        e(f"s_sub_u32 s{S_T2}, {LDS_VT-LDS_V}, s{S_T2}")
        for ks in range(4):
            e(f"v_add_u32 v{ks}, s{S_T1}, v{V_KA+ks}")
        for dt in range(8):
            e(f"v_add_u32 v{VTA+dt}, s{S_T2}, v{V_VA+dt}")
        order = cfg.get("order", "mid")
        pend = [dV0, dKT, dK1, dVT, dV1]
        nv = 8
        nearly = {"late": 0, "mid": 3, "early": 5}[order]
        for lines in pend[:nearly]:
            self.emit_all(lines)
            nv += sum(1 for x in lines if x.startswith("buffer_load"))
        pend = pend[nearly:]
        self.stamp()
        for k in range(8):
            e(f"s_waitcnt vmcnt({nv + 7 - k})")
            if k == 0:
                self.stamp()
            if k % 2 == 1 and pend:
                lines = pend.pop(0)
                self.emit_all(lines)
                nv += sum(1 for x in lines if x.startswith("buffer_load"))
            for x in range(4):
                src = 128 + 4 * k + x
                t = 176 + 2 * x
                e(f"v_lshlrev_b32 v{t}, 16, v{src}")
                e(f"v_and_b32 v{t+1}, 0xffff0000, v{src}")
            for x in range(4):
                t = 176 + 2 * x
                e(f"v_pk_mul_f32 v[{t}:{t+1}], v[{t}:{t+1}], s[{S_C}:{S_C+1}]")
            o = 184 + 4 * (k % 2)
            for x in range(4):
                t = 176 + 2 * x
                e(f"v_cvt_pk_bf16_f32 v{o+x}, v{t}, v{t+1}")
            e(f"ds_write_b128 v{4+k%4}, v[{o}:{o+3}] offset:{(k>>2)*4096+(k&3)*1024}")
        for lines in pend:
            self.emit_all(lines)
        e(f"s_waitcnt vmcnt(16) lgkmcnt(0)")
        e("s_barrier")
        self.stamp()
        for ks in range(4):
            e(f"ds_read_b128 a[{A_QA+4*ks}:{A_QA+4*ks+3}], v{48+ks}")
            e(self.k_read(ks, 0))
        for ks in range(4):
            e(self.k_read(4 + ks, 0))
        for ks in range(4):
            e(f"ds_read_b128 a[{A_QA+16+4*ks}:{A_QA+16+4*ks+3}], v{48+ks} offset:4096")
        for qb in range(2):
            for ks in range(4):
                e(f"ds_read_b128 a[{A_QB+16*qb+4*ks}:{A_QB+16*qb+4*ks+3}], v{52+ks} offset:{qb*4096}")
        e(f"s_mov_b32 s{S_T0}, {f32bits(-1e9*1.4426950408889634):#x}")
        bias1 = []
        for g in range(4):
            for k in range(2):
                src = 16 + 2 * g + k
                d0 = V_ST + 4 * g + 2 * k
                bias1.append(f"v_lshlrev_b32 v{d0}, 16, v{src}")
                bias1.append(f"v_and_b32 v{d0+1}, 0xffff0000, v{src}")
        for i in range(16):
            bias1.append(f"v_sub_f32 v{V_ST+i}, 1.0, v{V_ST+i}")
        self.emit_all(bias1[:16])
        mf = self.qk_mfmas("A", cin="0") + self.qk_mfmas("B", cin="0")
        pre = {}
        for k in range(4):
            pre[k] = [f"s_waitcnt lgkmcnt({min(15, 24-2*(k+1))})"]
        for k in range(4):
            pre[4 + k] = [f"s_waitcnt lgkmcnt({min(15, 24-8-(k+1))})"]
        for k in range(4):
            pre[8 + k] = [f"s_waitcnt lgkmcnt({24-12-(k+1)})"]
        pre[16] = ["s_waitcnt lgkmcnt(4)"]
        pre[24] = ["s_waitcnt lgkmcnt(0)"]
        gaps = {}

        def put(g, s):
            gaps.setdefault(g, []).append(s)
        for g, s in spread(bias1[16:], 0, 7):
            put(g, s)
        for g, s in spread(self.dma_k_stage(2), 8, 17):
            put(g, s)
        tA = self.blk("A")["IT"]
        bias2 = [f"v_fma_f32 v{V_ST+i}, v{V_ST+i}, s{S_T0}, v{tA+6+i//8}" for i in range(16)]
        for g, s in spread(self.ism_part1("A") + bias2, 19, 31):
            put(g, s)
        self.emit_sched(mf, gaps, pre)
        e(f"s_waitcnt vmcnt(8)")
        e("s_barrier")
        self.stamp()
        for i in range(8):
            e(self.k_read(i, 0, dst=A_KT, addr=0, off=0))
        for dt in range(8):
            self.emit_all(self.v_reads(dt, 0))
        p2a = self.ism_part2("A")
        self.emit_all(p2a[:16])
        mf = self.qk_mfmas("A", kf=A_KT, cin="self", dst=V_ST) + self.pv_mfmas("A")
        pre = {0: ["s_waitcnt lgkmcnt(15)"], 16: ["s_waitcnt lgkmcnt(15)", "s_nop 1"]}
        gaps = {}
        rd = [self.k_read(i, 1, dst=A_KT) for i in range(8)]
        for g, s in spread(p2a[16:], 0, 15):
            put(g, s)
        dm = self.dma_v_stage(2) + self.dma_k_stage(3) + self.dma_k_stage(0) + self.dma_v_stage(3)
        npf = cfg["pf"]
        if npf:
            e(f"s_cmp_eq_u32 s{S_QH}, 0")
            e(f"s_cselect_b32 s{S_PF}, s{S_K}, s{S_V}")
            e(f"s_cselect_b32 s{S_PF+1}, s{S_K+1}, s{S_V+1}")
            e(f"s_mov_b32 s{S_PF+2}, 524288")
            e(f"s_mov_b32 s{S_PF+3}, 0x00020000")
            e(f"s_add_u32 s{S_PFO}, s{S_WB}, {5*16384}")
            e(f"v_mul_u32_u24 v{V_PF}, {cfg['pfstride']}, v{ln}")
            for k in range(npf):
                dm += [self.pf_load(), f"s_add_u32 s{S_PFO}, s{S_PFO}, 16384"]
        rdv = []
        for dt in range(8):
            rdv += self.v_reads(dt, 0, dst=A_VT, addr=VTA, off=0)
        for g, s in spread(self.ism_part1("B"), 16, 23):
            put(g, s)
        smt = self.sm_stream("A", src=V_ST)
        h0 = [s for g, s in smt if g < 17]
        h1 = [s for g, s in smt if g >= 17]
        h0n = []
        for k, s in enumerate(h0):
            h0n.append(s)
            if s.startswith("v_exp") and k + 1 < len(h0) and h0[k + 1].startswith("v_cvt"):
                h0n.append("s_nop 0")
        for g, s in spread(h0n, 24, 33):
            put(g, s)
        for k, s in enumerate(h1):
            put(34, s)
            if s.startswith("v_exp") and k + 1 < len(h1) and h1[k + 1].startswith("v_cvt"):
                put(34, "s_nop 0")
        for g, s in spread(rdv, 0, 15):
            put(g, s)
        for g, s in spread(rd, 16, 31):
            put(g, s)
        for g, s in spread(dm, 0, 33):
            put(g, s)
        self.emit_sched(mf, gaps, pre)
        e("s_waitcnt lgkmcnt(0)")
        self.stamp()
        carry = spread(self.ism_part2("B"), 0, 29)
        p1 = 1 if npf else 0
        carry = self.iteration(0, carry, vm=16 + npf, pva_vf=A_VT, first=True)
        carry = self.iteration(1, carry, vm=8 + npf + 8 + p1)
        carry = self.iteration(2, carry, vm=npf + 2 * (8 + p1))
        vms = 2 * (8 + p1) + p1
        e(f"s_mov_b32 s{S_LOOP}, 6")
        self.label("L_loop")
        t = carry
        for m in (3, 4, 5, 6):
            le = None
            if m == 6:
                le = [f"s_sub_u32 s{S_LOOP}, s{S_LOOP}, 1", f"s_cmp_lg_u32 s{S_LOOP}, 0", "s_cbranch_scc1 L_loop"]
            t = self.iteration(m, t, loop_end=le, vm=vms)
        t = self.iteration(27, t, vm=vms)
        t = self.iteration(28, t, dma=False, vm=vms)
        self.stamp()
        t = self.iteration(29, t, dma=False, vm=(8 + p1) + p1)
        t = self.iteration(30, t, dma=False, vm=0, kread=False, bar=cfg["lastbar"])
        self.stamp()
        self.c("---- final PV")
        ds = [(g, s) for g, s in t if s.startswith("ds_")]
        sm = [(g, s) for g, s in t if not s.startswith("ds_")]
        self.emit_all([s for g, s in ds])
        e(f"v_lshlrev_b32 v32, 4, v{ln}")
        e(f"s_lshl_b32 s{S_T0}, s{S_W}, 14")
        e(f"s_xor_b32 s{S_T1}, s{S_T0}, 16384")
        e(f"v_add_u32 v33, s{S_T0}, v32")
        e(f"v_add_u32 v34, s{S_T1}, v32")
        e(f"s_lshl_b32 s{S_T0}, s{S_W}, 10")
        e(f"s_add_u32 s{S_T0}, s{S_T0}, {LDS_ML}")
        e(f"s_xor_b32 s{S_T1}, s{S_T0}, 1024")
        e(f"v_add_u32 v35, s{S_T0}, v32")
        e(f"v_add_u32 v36, s{S_T1}, v32")
        pa, pb = self.pv_mfmas("A", A_VT), self.pv_mfmas("B", A_VT)
        mf = pa[:9] + pb + pa[9:]
        gaps = {}
        sml = []
        for k, (g, s) in enumerate(sm):
            sml.append(s)
            if s.startswith("v_exp") and k + 1 < len(sm) and sm[k + 1][1].startswith("v_cvt"):
                sml.append("s_nop 0")
        for g, s in spread(sml, 0, 8):
            put(g, s)
        put(9, f"s_lshl_b32 s{S_T2}, s{S_W}, 14")
        put(9, f"s_add_u32 s{S_T2}, s{S_T2}, {LDS_V}")
        put(9, f"v_and_b32 v42, 15, v{ln}")
        put(10, f"v_lshrrev_b32 v43, 4, v{ln}")
        put(10, f"v_mul_u32_u24 v40, 272, v42")
        put(11, f"v_and_b32 v44, 1, v43")
        put(11, f"v_lshl_add_u32 v40, v44, 5, v40")
        put(30, f"v_lshrrev_b32 v44, 1, v43")
        put(31, f"v_lshl_add_u32 v40, v44, 4, v40")
        put(31, f"v_add_u32 v40, s{S_T2}, v40")
        put(32, f"v_mul_u32_u24 v41, 272, v43")
        put(32, f"v_lshl_add_u32 v41, v42, 4, v41")
        put(33, f"v_add_u32 v41, s{S_T2}, v41")
        put(20, f"v_mov_b32 v8, v{V_MB}")
        put(20, f"v_mov_b32 v9, v{V_MB+1}")
        put(21, f"v_mov_b32 v10, v{V_LB}")
        for r4 in range(16):
            mi = 9 + 9 * (r4 // 8) + r4 % 8
            put(mi + 3, f"ds_write_b128 v33, a[{A_OB+4*r4}:{A_OB+4*r4+3}] offset:{r4*1024}")
        put(29, f"v_mov_b32 v11, v{V_LB+4}")
        put(30, f"ds_write_b128 v35, v[8:11]")
        self.emit_sched(mf, gaps, pre={0: ["s_waitcnt lgkmcnt(0)"], 9: ["s_nop 1"]})
        e("s_waitcnt lgkmcnt(0)")
        e("s_barrier")
        self.stamp()
        e(f"ds_read_b128 v[8:11], v36")
        for r4 in range(16):
            e(f"ds_read_b128 v[{128+4*r4}:{128+4*r4+3}], v34 offset:{r4*1024}")
        e("s_waitcnt lgkmcnt(15)")
        for qb in range(2):
            e(f"v_max_f32 v{12+qb}, v{V_MA+qb}, v{8+qb}")
        for qb in range(2):
            e(f"v_sub_f32 v{24+qb}, v{V_MA+qb}, v{12+qb}")
            e(f"v_sub_f32 v{26+qb}, v{8+qb}, v{12+qb}")
        for qb in range(2):
            e(f"v_exp_f32 v{24+qb}, v{24+qb}")
            e(f"v_exp_f32 v{26+qb}, v{26+qb}")
        e("s_nop 0")
        for qb in range(2):
            e(f"v_mul_f32 v{28+qb}, v{V_LA+4*qb}, v{24+qb}")
        for qb in range(2):
            e(f"v_fma_f32 v{28+qb}, v{10+qb}, v{26+qb}, v{28+qb}")
        for qb in range(2):
            e(f"v_rcp_f32 v{28+qb}, v{28+qb}")
        e("s_nop 0")
        for qb in range(2):
            e(f"v_mul_f32 v{16+4*qb}, v{24+qb}, v{28+qb}")
            e(f"v_mul_f32 v{18+4*qb}, v{26+qb}, v{28+qb}")
        for qb in range(2):
            e(f"v_mov_b32 v{17+4*qb}, v{16+4*qb}")
            e(f"v_mov_b32 v{19+4*qb}, v{18+4*qb}")
        stf = cfg.get("stf", "")
        e(f"s_lshl_b32 s{S_T0}, s{S_W}, 13")
        e(f"s_add_u32 s{S_T1}, s{S_T0}, 4096")
        log = ["ml"] + [f"o{r}" for r in range(16)]
        def wait(tag):
            n = len(log) - 1 - log.index(tag)
            e(f"s_waitcnt lgkmcnt({min(15, n)})")
        for qb in range(2):
            fa, fb = 16 + 4 * qb, 18 + 4 * qb
            for dp in range(4):
                gi = 4 * qb + dp
                base = 32 * qb + 8 * dp
                r4 = base // 4
                wait(f"o{r4+1}")
                pk = 48 + 4 * (gi % 4)
                for k in range(0, 8, 2):
                    o = 128 + base + k
                    e(f"v_pk_mul_f32 v[{o}:{o+1}], v[{o}:{o+1}], v[{fb}:{fb+1}]")
                for k in range(0, 8, 2):
                    o = 128 + base + k
                    oa = V_OA + base + k
                    e(f"v_pk_fma_f32 v[{o}:{o+1}], v[{oa}:{oa+1}], v[{fa}:{fa+1}], v[{o}:{o+1}]")
                for k in range(4):
                    o = 128 + base + 2 * k
                    e(f"v_cvt_pk_bf16_f32 v{pk+k}, v{o}, v{o+1}")
                if qb == 1 and dp >= 2:
                    for k in (2 * (dp - 2), 2 * (dp - 2) + 1):
                        wait(f"r{k}")
                        e(f"buffer_store_dwordx4 v[{64+4*k}:{67+4*k}], v32, s[{S_O}:{S_O+3}], s{S_T0} offen offset:{k*1024}{stf}")
                else:
                    e("s_nop 1")
                e(f"v_permlane16_swap_b32 v{pk}, v{pk+2}")
                e(f"v_permlane16_swap_b32 v{pk+1}, v{pk+3}")
                e("s_nop 1")
                e(f"ds_write_b128 v40, v[{pk}:{pk+3}] offset:{qb*16*272+dp*64}")
                log.append(f"w{gi}")
                if qb == 1 and dp == 0:
                    for k in range(4):
                        e(f"ds_read_b128 v[{64+4*k}:{67+4*k}], v41 offset:{k*4*272}")
                        log.append(f"r{k}")
        for k in range(4, 8):
            e(f"ds_read_b128 v[{64+4*k}:{67+4*k}], v41 offset:{k*4*272}")
            log.append(f"r{k}")
        for k in range(4, 8):
            wait(f"r{k}")
            e(f"buffer_store_dwordx4 v[{64+4*k}:{67+4*k}], v32, s[{S_O}:{S_O+3}], s{S_T1} offen offset:{(k%4)*1024}{stf}")
        if self.stamps:
            self.stamp()
            e("s_waitcnt vmcnt(0)")
            self.stamp()
            e("s_memrealtime s[100:101]")
            e("s_waitcnt lgkmcnt(0)")
            if 'dbgst' in self.exp:
                e("s_cmp_lg_u32 s2, 100")
                e("s_cbranch_scc1 L_done")
                e(f"s_cmp_lg_u32 s{S_W}, 0")
                e("s_cbranch_scc1 L_done")
                e("s_mov_b32 s8, s18"); e("s_mov_b32 s9, s19"); e("s_mov_b32 s10, 256"); e("s_mov_b32 s11, 0x00020000")
                e("v_mov_b32 v4, 0")
                e(f"v_cmp_eq_u32 vcc, 0, v{ln}")
                e("s_and_saveexec_b64 s[12:13], vcc")
                for k in range(1, self.nstamp):
                    e(f"s_sub_u32 s3, s{72+2*k}, s72")
                    e("v_mov_b32 v6, s3")
                    e(f"buffer_store_dword v6, v4, s[8:11], 0 offen offset:{4*k}")
                e("s_sub_u32 s3, s100, s98")
                e("v_mov_b32 v6, s3")
                e(f"buffer_store_dword v6, v4, s[8:11], 0 offen offset:0")
            else:
                e("s_mov_b32 s8, s18"); e("s_mov_b32 s9, s19"); e("s_mov_b32 s10, 0x1000000"); e("s_mov_b32 s11, 0x00020000")
                e("s_lshl_b32 s3, s2, 2")
                e(f"s_add_u32 s3, s3, s{S_W}")
                e("s_lshl_b32 s3, s3, 7")
                e("v_mov_b32 v4, s3")
                e(f"v_cmp_eq_u32 vcc, 0, v{ln}")
                e("s_and_saveexec_b64 s[12:13], vcc")
                for k in range(self.nstamp):
                    e(f"s_sub_u32 s3, s{72+2*k}, s72")
                    e("v_mov_b32 v6, s3")
                    e(f"buffer_store_dword v6, v4, s[8:11], 0 offen offset:{4*k}")
                e("v_mov_b32 v6, s100")
                e(f"buffer_store_dword v6, v4, s[8:11], 0 offen offset:{4*16}")
                e("v_mov_b32 v6, s98")
                e(f"buffer_store_dword v6, v4, s[8:11], 0 offen offset:{4*17}")
        self.label("L_done")
        e("s_endpgm")
        for u, X, src in self.stubs:
            self.label(f"L_stub{u}")
            if src is not None:
                S = self.blk(X)["S"]
                for i in range(16):
                    e(f"v_mov_b32 v{S+i}, v{src+i}")
            e(f"s_call_b64 s[{S_RET}:{S_RET+1}], L_slow{X}")
            e(f"s_branch L_back{u}")
        self.slow_path("A")
        self.slow_path("B")
        self.label("L_codeend")
        L.append('.section .rodata,"a"')
        L.append(".p2align 6")
        L.append(f".amdhsa_kernel {KNAME}")
        L.append("  .amdhsa_next_free_vgpr 512")
        L.append("  .amdhsa_next_free_sgpr 102")
        L.append("  .amdhsa_accum_offset 256")
        L.append("  .amdhsa_group_segment_fixed_size 0")
        L.append("  .amdhsa_kernarg_size 72")
        L.append("  .amdhsa_user_sgpr_count 2")
        L.append("  .amdhsa_user_sgpr_kernarg_segment_ptr 1")
        L.append("  .amdhsa_system_sgpr_workgroup_id_x 1")
        L.append(".end_amdhsa_kernel")
        return "\n".join(L) + "\n"


if __name__ == "__main__":
    ap = argparse.ArgumentParser()
    ap.add_argument("-o", default="k10.s")
    ap.add_argument("--no-nt", action="store_true")
    ap.add_argument("--stamps", action="store_true")
    ap.add_argument("--no-pf", action="store_true")
    ap.add_argument("--exp", default="")
    ap.add_argument("--cfg", default="")
    a = ap.parse_args()
    cfg = eval("dict(" + a.cfg + ")") if a.cfg else None
    g = Gen(nt=not a.no_nt, stamps=a.stamps, code_pf=not a.no_pf, exp=a.exp, cfg=cfg)
    open(a.o, "w").write(g.build())
```

```python
import sys, struct, argparse

KNAME = "standalone__tree_speculative_verify_tree_attention_over_candidate_token_tree__sampling_kernel"
HEADER = open("standalone__tree_speculative_verify_tree_attention_over_candidate_token_tree__sampling.s.ref").read().split("; Override launch")[0]


def f32bits(x):
    return struct.unpack("<I", struct.pack("<f", x))[0]


V_OA = 64
V_SA, V_SB = 128, 144
V_CA, V_CB = 160, 168
V_PA, V_PB = 176, 184
V_EA, V_EB = 192, 196
V_LA, V_LB = 200, 208
V_MA, V_MB = 216, 218
V_XA, V_XB = 220, 221
V_LANE = 222
V_KA = 224
V_VA = 228
V_DK = 236
V_DV = 240
V_ONE = 244
V_SL = 0
V_ST = 32
V_IT = 48
VTA = 248
A_OB = 0
A_QA, A_QB = 64, 96
A_KF = 128
A_VF = 160
A_VT = 192
A_KT = 224
S_K, S_V, S_Q, S_KT, S_VT, S_M, S_O = 20, 24, 28, 32, 36, 40, 44
S_W, S_I, S_J = 48, 49, 50
S_KOFF, S_VOFF = 51, 52
S_WB = 53
S_LOOP = 54
S_THR = 55
S_T4 = 59
S_PFO = 56
S_PF = 28
V_PF = 242
V_PFD = 243
S_RET = 60
S_T0, S_T1, S_T2, S_T3 = 62, 63, 64, 65
S_BH, S_QH = 66, 67
S_C = 68
S_PC = 70

LDS_V = 65536
LDS_KT = 131072
LDS_VT = 139264
LDS_ML = 147456
BIAS = 10.0
SCALE = (128 ** -0.5) * 1.4426950408889634
NG = 68
G_PVA, G_QKB, G_PVB = 16, 34, 50


def spread(ops, g0, g1):
    n = len(ops)
    k = g1 - g0 + 1
    return [(g0 + (i * k) // n, op) for i, op in enumerate(ops)]


class Gen:
    def __init__(self, nt=True, code_pf=True, stamps=False, exp="", cfg=None):
        self.L = []
        self.nt = " nt" if nt else ""
        self.code_pf = code_pf
        self.uid = 0
        self.stubs = []
        self.stamps = stamps
        self.nstamp = 0
        self.exp = exp
        self.cfg = dict(sma=22, smb=56, bar=5, stf=" nt",
                        kread=[7, 9, 11, 15, 17, 19, 21, 23],
                        vread=[29, 33, 35, 37, 41, 43, 45, 49, 51, 53, 55, 57, 59, 61, 61, 63],
                        dma=[13, 20, 27, 31, 39, 47, 54, 65], lastbar=27, pf=0, pfgap=67, pfstride=64, pfpol=" nt")
        if cfg:
            self.cfg.update(cfg)

    def e(self, s):
        self.L.append("  " + s)

    def label(self, s):
        self.L.append(s + ":")

    def c(self, s):
        self.L.append("  ; " + s)

    def stamp(self):
        if self.stamps:
            k = self.nstamp
            self.nstamp += 1
            assert k < 13
            self.e(f"s_memtime s[{72+2*k}:{73+2*k}]")

    def blk(self, X):
        if X == "A":
            return dict(S=V_SA, C=V_CA, P=V_PA, E=V_EA, L=V_LA, M=V_MA, Q=A_QA, IT=V_IT, X=V_XA)
        return dict(S=V_SB, C=V_CB, P=V_PB, E=V_EB, L=V_LB, M=V_MB, Q=A_QB, IT=V_IT + 8, X=V_XB)

    def qk_mfmas(self, X, kf=A_KF, cin=None, dst=None):
        r = self.blk(X)
        S = r["S"] if dst is None else dst
        Q = r["Q"]
        out = []
        for qb in range(2):
            for kt in range(2):
                s = S + 8 * qb + 4 * kt
                for ks in range(4):
                    if ks == 0 and cin != "self":
                        c = f"v[{r['C']+4*qb}:{r['C']+4*qb+3}]" if cin is None else cin
                    else:
                        c = f"v[{s}:{s+3}]"
                    k = kf + 4 * (4 * kt + ks)
                    q = Q + 4 * (4 * qb + ks)
                    out.append(f"v_mfma_f32_16x16x32_bf16 v[{s}:{s+3}], a[{k}:{k+3}], a[{q}:{q+3}], {c}")
        return out

    def pv_mfmas(self, X, vf=A_VF):
        r = self.blk(X)
        P, Lr = r["P"], r["L"]
        out = []
        for qb in range(2):
            grp = []
            for dt in range(8):
                f = vf + 4 * dt
                ob = 32 * qb + 4 * dt
                if X == "A":
                    o = f"v[{V_OA+ob}:{V_OA+ob+3}]"
                else:
                    o = f"a[{A_OB+ob}:{A_OB+ob+3}]"
                grp.append(f"v_mfma_f32_16x16x32_bf16 {o}, a[{f}:{f+3}], v[{P+4*qb}:{P+4*qb+3}], {o}")
            l = f"v[{Lr+4*qb}:{Lr+4*qb+3}]"
            grp.append(f"v_mfma_f32_16x16x32_bf16 {l}, v[{V_ONE}:{V_ONE+3}], v[{P+4*qb}:{P+4*qb+3}], {l}")
            out += grp
        return out

    def sm_stream(self, X, src=None):
        r = self.blk(X)
        S, P, E, XX = r["S"], r["P"], r["E"], r["X"]
        if src is not None:
            S = src
        out = []
        for e in range(16):
            out.append((2 * e, f"v_exp_f32 v{E+e%4}, v{S+e}"))
            if e % 2 == 1:
                k = e // 2
                out.append((2 * e + 1, f"v_cvt_pk_bf16_f32 v{P+k}, v{E+(e-1)%4}, v{E+e%4}"))
                if k == 3:
                    out.append((2 * e - 1, f"v_or3_b32 v{XX}, v{P}, v{P+1}, v{P+2}"))
                if k == 5:
                    out.append((2 * e - 1, f"v_or3_b32 v{XX}, v{XX}, v{P+3}, v{P+4}"))
                if k == 7:
                    out.append((2 * e - 1, f"v_or3_b32 v{XX}, v{XX}, v{P+5}, v{P+6}"))
        out.append((33, f"v_bitop3_b32 v{XX}, v{XX}, v{P+7}, s{S_THR} bitop3:0xa8"))
        out.append((35, f"v_cmp_ne_u32 vcc, 0, v{XX}"))
        self.uid += 1
        u = self.uid
        self.stubs.append((u, X, src))
        out.append((37, f"s_cbranch_vccnz L_stub{u}\nL_back{u}:"))
        out.sort(key=lambda x: x[0])
        return out

    def rowmax(self, S, t, dst, floor0=False):
        ops = [
            f"v_max3_f32 v{t}, v{S}, v{S+1}, v{S+2}",
            f"v_max3_f32 v{t+1}, v{S+3}, v{S+4}, v{S+5}",
            f"v_max3_f32 v{t}, v{t}, v{S+6}, v{S+7}",
            f"v_max_f32 v{t}, v{t}, v{t+1}",
            f"v_mov_b32 v{t+1}, v{t}",
            "s_nop 1",
            f"v_permlane16_swap_b32 v{t}, v{t+1}",
            "s_nop 1",
            f"v_max_f32 v{t}, v{t}, v{t+1}",
            f"v_mov_b32 v{t+1}, v{t}",
            "s_nop 1",
            f"v_permlane32_swap_b32 v{t}, v{t+1}",
            "s_nop 1",
        ]
        ops.append(f"v_max_f32 v{t}, v{t}, v{t+1}")
        ops.append(f"v_add_f32 v{dst}, {f32bits(BIAS):#x}, v{t}")
        if floor0:
            ops.append(f"v_max_f32 v{dst}, 0, v{dst}")
        return ops

    def ism_part1(self, X):
        r = self.blk(X)
        S, M, t = r["S"], r["M"], r["IT"]
        a = self.rowmax(S, t, M)
        b = self.rowmax(S + 8, t + 3, M + 1)
        ops = []
        for x, y in zip(a, b):
            if x.startswith("s_nop"):
                ops.append("s_nop 0")
            else:
                ops += [x, y]
        ops.append(f"v_sub_f32 v{t+6}, 0, v{M}")
        ops.append(f"v_sub_f32 v{t+7}, 0, v{M+1}")
        return ops

    def ism_part2(self, X):
        r = self.blk(X)
        S, C, P, E, M, t = r["S"], r["C"], r["P"], r["E"], r["M"], r["IT"]
        ops = []
        for i in range(16):
            ops.append(f"v_sub_f32 v{S+i}, v{S+i}, v{M+i//8}")
        ex = []
        for e in range(17):
            if e < 16:
                ex.append(f"v_exp_f32 v{E+e%4}, v{S+e}")
            if e < 8:
                ex.append(f"v_mov_b32 v{C+e}, v{t+6+e//4}")
            elif e == 16:
                ex.append("s_nop 0")
            p = e - 1
            if p >= 0 and p % 2 == 1:
                ex.append(f"v_cvt_pk_bf16_f32 v{P+p//2}, v{E+(p-1)%4}, v{E+p%4}")
        return ops + ex

    def emit_line(self, s):
        if "\n" in s:
            for x in s.split("\n"):
                self.emit_line(x)
            return
        if s.endswith(":"):
            self.label(s[:-1])
        else:
            self.e(s)

    def k_read(self, idx, slot, dst=A_KF, addr=V_KA, off=None):
        kt, ks = idx // 4, idx % 4
        o = (slot * 16384 if off is None else off) + kt * 4096
        return f"ds_read_b128 a[{dst+4*idx}:{dst+4*idx+3}], v{addr+ks} offset:{o}"

    def v_reads(self, dt, slot, dst=A_VF, addr=V_VA, off=None):
        o = slot * 16384 if off is None else off
        f = dst + 4 * dt
        return [f"ds_read_b64_tr_b16 a[{f}:{f+1}], v{addr+dt} offset:{o}",
                f"ds_read_b64_tr_b16 a[{f+2}:{f+3}], v{addr+dt} offset:{o+4096}"]

    def dma_k(self, q, soff=S_KOFF, srd=S_K, v=None):
        vv = V_DK + q if v is None else v
        return f"buffer_load_dwordx4 v{vv}, s[{srd}:{srd+3}], s{soff} offen offset:{q*1024}{self.nt} lds"

    def dma_v(self, q, soff=S_VOFF, srd=S_V, v=None):
        vv = V_DV + (q & 1) if v is None else v
        return f"buffer_load_dwordx4 v{vv}, s[{srd}:{srd+3}], s{soff} offen offset:{q*1024}{self.nt} lds"

    def pf_load(self):
        return f"buffer_load_dword v{V_PFD}, v{V_PF}, s[{S_PF}:{S_PF+3}], s{S_PFO} offen{self.cfg['pfpol']}"

    def dma_k_stage(self, slot):
        return ([f"s_add_u32 m0, s{S_WB}, {slot*16384}", "s_nop 0"] + [self.dma_k(q) for q in range(4)]
                + [f"s_add_u32 s{S_KOFF}, s{S_KOFF}, 16384"])

    def dma_v_stage(self, slot):
        return ([f"s_add_u32 m0, s{S_WB}, {LDS_V+slot*16384}", "s_nop 0"] + [self.dma_v(q) for q in range(4)]
                + [f"s_add_u32 s{S_VOFF}, s{S_VOFF}, 16384"])

    def emit_all(self, lines):
        for s in lines:
            self.emit_line(s)

    def emit_sched(self, mfmas, gaps, pre=None):
        pre = pre or {}
        n = len(mfmas)
        for k in range(n):
            for s in pre.get(k, []):
                self.emit_line(s)
            self.e(mfmas[k])
            for s in gaps.get(k, []):
                self.emit_line(s)
        for k in sorted(g for g in gaps if g >= n):
            for s in gaps[k]:
                self.emit_line(s)

    def iteration(self, m, carry, dma=True, vm=16, pva_vf=None, kread=True, loop_end=None, bar=None, first=False):
        cfg = self.cfg
        mm = m % 4
        KB, VB = (A_KF, A_KT), (A_VF, A_VT)
        self.c(f"---- iteration {m} (mod 4 = {mm})")
        items = []

        def put(g, s, pri=None):
            if 'novalu' in self.exp and s.startswith('v_'):
                return
            if 'nods' in self.exp and s.startswith('ds_'):
                return
            if pri is None:
                if s.startswith("v_") or s.startswith("s_nop"):
                    pri = 6
                elif s.startswith("ds_") and m < cfg.get("slowN", 0) and cfg.get("slowvf", 1):
                    pri = 6.5
                elif s.startswith("ds_") or s.startswith("buffer_"):
                    pri = 3
                else:
                    pri = 2
            items.append((g, pri, len(items), s))

        kf, vf = KB[(m + 1) % 2], VB[m % 2]
        mf = (self.qk_mfmas("A", kf) + self.pv_mfmas("A", vf if pva_vf is None else pva_vf)
              + self.qk_mfmas("B", kf) + self.pv_mfmas("B", vf))
        assert len(mf) == NG
        for g, s in carry:
            put(g, s)
        for g, s in self.sm_stream("A"):
            put(cfg["sma"] + g, s)
        for g, s in self.sm_stream("B"):
            put(cfg["smb"] + g, s)
        bg = cfg["bar"] if bar is None else bar
        if dma and 'nodma' not in self.exp:
            dm_ = cfg["dma"] if m >= cfg.get("slowN", 0) else [7, 9, 11, 13, 15, 17, 19, 20]
            gk, gv = dm_[:4], dm_[4:]
            assert gk[0] - 1 > bg and gv[0] - 1 >= gk[3] and gv[3] + 1 < NG
            put(gk[0] - 1, f"s_add_u32 m0, s{S_WB}, {((mm+1)%4)*16384}")
            for q, g in enumerate(gk):
                put(g, self.dma_k(q))
            put(gv[0] - 1, f"s_add_u32 m0, s{S_WB}, {LDS_V+mm*16384}", 4 if gv[0] - 1 == gk[3] else None)
            put(gk[3] + 1, f"s_add_u32 s{S_KOFF}, s{S_KOFF}, 16384")
            for q, g in enumerate(gv):
                put(g, self.dma_v(q))
            put(gv[3] + 1, f"s_add_u32 s{S_VOFF}, s{S_VOFF}, 16384")
            if cfg["pf"]:
                assert cfg["pfgap"] > gv[3]
                put(cfg["pfgap"], self.pf_load())
                put(cfg["pfgap"], f"s_add_u32 s{S_PFO}, s{S_PFO}, 16384", 4)
        put(bg, f"s_waitcnt vmcnt({vm}) lgkmcnt(0)", 0)
        if 'nobar' not in self.exp:
            put(bg, "s_barrier", 1)
        if kread:
            for i in range(8):
                assert bg < cfg["kread"][i] < NG
                put(cfg["kread"][i], self.k_read(i, (mm + 2) % 4, dst=KB[m % 2]))
        vr = []
        for dt in range(8):
            vr += self.v_reads(dt, (mm + 1) % 4, dst=VB[(m + 1) % 2])
        for k, s in enumerate(vr):
            g = cfg["vread"][k]
            assert bg < g < NG and g >= 26 + k // 2
            put(g, s)
        if loop_end:
            put(NG - 3, loop_end[0])
            put(NG - 1, loop_end[1], 5)
            put(NG - 1, loop_end[2], 9)
        items.sort()
        gaps = {}
        nxt = []
        for g, pri, _, s in items:
            if g >= NG:
                nxt.append((g - NG, s))
            else:
                gaps.setdefault(g, []).append(s)
        pre = {}
        if not first:
            assert max(cfg["kread"]) < min(cfg["vread"])
            pre[0] = ["s_waitcnt lgkmcnt(15)"]
            if bg >= 16:
                pre[16] = ["s_waitcnt lgkmcnt(0)"]
        self.emit_sched(mf, gaps, pre)
        return nxt

    def slow_path(self, X):
        r = self.blk(X)
        S, C, P, Lr, M = r["S"], r["C"], r["P"], r["L"], r["M"]
        t = V_SL
        self.label(f"L_slow{X}")
        e = self.e
        for qb in range(2):
            d = t + 3
            f = t + 4
            self.emit_all(self.rowmax(S + 8 * qb, t, d, floor0=True))
            e(f"v_add_f32 v{M+qb}, v{M+qb}, v{d}")
            e(f"v_exp_f32 v{f}, -v{d}")
            e(f"v_sub_f32 v{t+5}, 0, v{M+qb}")
            for i in range(4):
                e(f"v_mov_b32 v{C+4*qb+i}, v{t+5}")
            e(f"v_mul_f32 v{Lr+4*qb}, v{Lr+4*qb}, v{f}")
            if X == "A":
                for i in range(32):
                    o = V_OA + 32 * qb + i
                    e(f"v_mul_f32 v{o}, v{o}, v{f}")
            else:
                for i in range(0, 32, 4):
                    for k in range(4):
                        e(f"v_accvgpr_read_b32 v{t+8+k}, a{A_OB+32*qb+i+k}")
                    for k in range(4):
                        e(f"v_mul_f32 v{t+8+k}, v{t+8+k}, v{f}")
                    for k in range(4):
                        e(f"v_accvgpr_write_b32 a{A_OB+32*qb+i+k}, v{t+8+k}")
            for i in range(0, 8, 4):
                for k in range(4):
                    e(f"v_sub_f32 v{t+8+k}, v{S+8*qb+i+k}, v{d}")
                for k in range(4):
                    e(f"v_exp_f32 v{t+8+k}, v{t+8+k}")
                e("s_nop 0")
                e(f"v_cvt_pk_bf16_f32 v{P+4*qb+i//2}, v{t+8}, v{t+9}")
                e(f"v_cvt_pk_bf16_f32 v{P+4*qb+i//2+1}, v{t+10}, v{t+11}")
        e("s_nop 1")
        e(f"s_setpc_b64 s[{S_RET}:{S_RET+1}]")

    def srd(self, d, lo, hi, off, size):
        e = self.e
        e(f"s_add_u32 s{d}, s{lo}, s{off}")
        e(f"s_addc_u32 s{d+1}, s{hi}, 0")
        e(f"s_mov_b32 s{d+2}, {size}")
        e(f"s_mov_b32 s{d+3}, 0x00020000")

    def build(self):
        e = self.e
        L = self.L
        cfg = self.cfg
        L.append(HEADER.rstrip())
        L.append("; @launch grid=(256,1,1) block=(256,1,1) lds=163840")
        L.append('.amdgcn_target "amdgcn-amd-amdhsa--gfx950"')
        L.append(".text")
        L.append(f".globl {KNAME}")
        L.append(".p2align 8")
        L.append(f".type {KNAME},@function")
        self.label(KNAME)
        self.stamp()
        if self.stamps:
            e("s_memrealtime s[98:99]")
        e("s_cmp_ge_u32 s2, 256")
        e("s_cbranch_scc1 L_done")
        e("s_load_dwordx8 s[4:11], s[0:1], 0")
        e("s_load_dwordx4 s[12:15], s[0:1], 32")
        e("s_load_dwordx2 s[16:17], s[0:1], 48")
        if self.stamps:
            e(f"s_load_dwordx2 s[18:19], s[0:1], {56 if 'dbgst' in self.exp else 64}")
        e(f"s_getpc_b64 s[{S_PC}:{S_PC+1}]")
        self.label("L_pcbase")
        e(f"v_lshrrev_b32 v1, 6, v0")
        e(f"v_and_b32 v{V_LANE}, 63, v0")
        ln = V_LANE
        if self.code_pf:
            e(f"v_lshlrev_b32 v13, 4, v0")
            e("s_cmp_ge_u32 s2, 32")
            e("s_cbranch_scc1 L_nopf")
            e("s_mov_b32 s3, L_codeend-L_pcbase-16")
            for k in range(cfg.get('npfc', 6)):
                e(f"v_min_u32 v12, s3, v13")
                e(f"global_load_dwordx4 v[24:27], v12, s[{S_PC}:{S_PC+1}]")
                e(f"v_add_u32 v13, 0x1000, v13")
            self.label("L_nopf")
        e("s_and_b32 s3, s2, 7")
        e(f"v_readfirstlane_b32 s{S_W}, v1")
        e(f"s_lshr_b32 s{S_BH}, s2, 4")
        e(f"s_lshl_b32 s{S_BH}, s{S_BH}, 3")
        e(f"s_add_u32 s{S_BH}, s{S_BH}, s3")
        if 'samebh' in self.exp:
            e(f"s_and_b32 s{S_BH}, s{S_BH}, 7")
        e(f"s_lshr_b32 s{S_QH}, s2, 3")
        e(f"s_and_b32 s{S_QH}, s{S_QH}, 1")
        e(f"s_lshr_b32 s{S_I}, s{S_W}, 1")
        e(f"s_and_b32 s{S_J}, s{S_W}, 1")
        e(f"s_lshl_b32 s{S_WB}, s{S_W}, 12")
        e(f"v_lshrrev_b32 v1, 4, v{ln}")
        e(f"v_and_b32 v2, 15, v{ln}")
        e(f"v_lshlrev_b32 v3, 8, v1")
        e(f"v_add_u32 v3, s{S_WB}, v3")
        for q in range(4):
            e(f"v_add_u32 v4, {4*q}, v1")
            e(f"v_xor_b32 v4, v4, v2")
            e(f"v_lshl_add_u32 v{V_DK+q}, v4, 4, v3")
        for q in range(2):
            e(f"v_add_u32 v4, {4*q}, v1")
            e(f"v_lshlrev_b32 v4, 1, v4")
            e(f"v_xor_b32 v4, v4, v2")
            e(f"v_lshl_add_u32 v{V_DV+q}, v4, 4, v3")
        e(f"v_lshlrev_b32 v7, 6, v2")
        e(f"v_lshl_add_u32 v7, v1, 3, v7")
        e(f"v_lshlrev_b32 v14, 4, v{ln}")
        e(f"s_lshl_b32 s{S_T0}, s{S_BH}, 16")
        e(f"s_lshl_b32 s{S_T1}, s{S_QH}, 15")
        e(f"s_add_u32 s{S_T0}, s{S_T0}, s{S_T1}")
        e(f"s_lshl_b32 s{S_T1}, s{S_BH}, 19")
        e(f"s_lshr_b32 s{S_T2}, s{S_BH}, 2")
        e(f"s_lshl_b32 s{S_T2}, s{S_T2}, 11")
        e(f"s_lshl_b32 s{S_T3}, s{S_W}, 13")
        e(f"s_mov_b32 s{S_KOFF}, 0")
        e(f"s_mov_b32 s{S_VOFF}, 0")
        e("s_waitcnt lgkmcnt(0)")
        self.stamp()
        self.srd(S_Q, 4, 5, S_T0, 32768)
        for k in range(4):
            e(f"buffer_load_dwordx4 v[{128+4*k}:{131+4*k}], v14, s[{S_Q}:{S_Q+3}], s{S_T3} offen offset:{k*1024}{self.nt}")
        e(f"s_add_u32 s{S_T3}, s{S_T3}, 4096")
        self.srd(S_K, 6, 7, S_T1, 524288)
        for k in range(4):
            e(f"buffer_load_dwordx4 v[{144+4*k}:{147+4*k}], v14, s[{S_Q}:{S_Q+3}], s{S_T3} offen offset:{k*1024}{self.nt}")
        self.emit_all(self.dma_k_stage(0))
        self.srd(S_M, 14, 15, S_T2, 2048)
        for qb in range(2):
            for kt in range(2):
                g = 2 * qb + kt
                e(f"buffer_load_dwordx2 v[{16+2*g}:{17+2*g}], v7, s[{S_M}:{S_M+3}], 0 offen offset:{qb*1024+kt*32}")
        self.srd(S_V, 8, 9, S_T1, 524288)
        e(f"s_lshl_b32 s{S_T1}, s{S_BH}, 13")
        self.srd(S_KT, 10, 11, S_T1, 8192)
        self.srd(S_VT, 12, 13, S_T1, 8192)
        self.srd(S_O, 16, 17, S_T0, 32768)
        e(f"s_lshl_b32 s{S_T4}, s{S_W}, 11")
        e(f"s_lshl_b32 s{S_T2}, s{S_J}, 3")
        e(f"v_lshlrev_b32 v8, 8, v1")
        e(f"v_add_u32 v8, s{S_T4}, v8")
        for q in range(2):
            e(f"v_add_u32 v9, s{S_T2}, v1")
            e(f"v_add_u32 v9, {4*q}, v9")
            e(f"v_xor_b32 v9, v9, v2")
            e(f"v_lshl_add_u32 v{(15,13)[q]}, v9, 4, v8")
            e(f"v_subrev_u32 v{(12,11)[q]}, s{S_T4}, v{V_DV+q}")
        e(f"s_mov_b32 s{S_T3}, 0")
        dV0 = self.dma_v_stage(0)
        dKT = [f"s_add_u32 m0, s{S_T4}, {LDS_KT}", "s_nop 0"] + [self.dma_k(q, soff=S_T3, srd=S_KT, v=(15, 13)[q]) for q in range(2)]
        dK1 = self.dma_k_stage(1)
        dVT = [f"s_add_u32 m0, s{S_T4}, {LDS_VT}", "s_nop 0"] + [self.dma_v(q, soff=S_T3, srd=S_VT, v=(12, 11)[q]) for q in range(2)]
        dV1 = self.dma_v_stage(1)
        e(f"s_lshl_b32 s{S_T2}, s{S_J}, 13")
        e(f"v_lshlrev_b32 v8, 8, v2")
        e(f"v_add_u32 v8, s{S_T2}, v8")
        for ks in range(4):
            e(f"v_add_u32 v10, {4*ks}, v1")
            e(f"v_xor_b32 v10, v10, v2")
            e(f"v_lshl_add_u32 v{V_KA+ks}, v10, 4, v8")
        e(f"v_lshrrev_b32 v9, 2, v2")
        e(f"v_lshl_add_u32 v10, v1, 2, v9")
        e(f"v_and_b32 v5, 7, v10")
        e(f"v_lshlrev_b32 v10, 8, v10")
        e(f"s_add_u32 s{S_T2}, s{S_T2}, {LDS_V}")
        e(f"v_add_u32 v10, s{S_T2}, v10")
        e(f"v_and_b32 v6, 3, v2")
        e(f"v_lshl_add_u32 v10, v6, 3, v10")
        for dt in range(8):
            e(f"v_xor_b32 v6, {dt}, v5")
            e(f"v_lshl_add_u32 v{V_VA+dt}, v6, 5, v10")
        for i in range(64):
            e(f"v_mov_b32 v{V_OA+i}, 0")
        for i in range(64):
            e(f"v_accvgpr_write_b32 a{A_OB+i}, 0")
        e(f"s_mov_b32 s{S_THR}, 0x40004000")
        for i in range(16):
            e(f"v_mov_b32 v{V_LA+i}, 0")
        for i in range(4):
            e(f"v_mov_b32 v{V_ONE+i}, 0x3f803f80")
        e(f"s_mov_b32 s{S_C}, {f32bits(SCALE):#x}")
        e(f"s_mov_b32 s{S_C+1}, {f32bits(SCALE):#x}")
        e(f"s_lshl_b32 s{S_T1}, s{S_I}, 16")
        e(f"s_add_u32 s{S_T1}, s{S_T1}, 49152")
        e(f"s_lshl_b32 s{S_T2}, s{S_J}, 13")
        e(f"s_add_u32 s{S_T2}, s{S_T2}, s{S_T1}")
        e(f"s_sub_u32 s{S_T2}, s{S_T2}, s{S_WB}")
        for q in range(4):
            e(f"v_add_u32 v{4+q}, s{S_T2}, v{V_DK+q}")
        e(f"s_lshl_b32 s{S_T2}, s{S_J}, 14")
        e(f"s_sub_u32 s{S_T2}, s{S_T1}, s{S_T2}")
        e(f"s_add_u32 s{S_T2}, s{S_T2}, 8192")
        for ks in range(4):
            e(f"v_add_u32 v{48+ks}, s{S_T1}, v{V_KA+ks}")
            e(f"v_add_u32 v{52+ks}, s{S_T2}, v{V_KA+ks}")
        e(f"s_lshl_b32 s{S_T2}, s{S_J}, 13")
        e(f"s_sub_u32 s{S_T1}, {LDS_KT}, s{S_T2}")
        e(f"s_sub_u32 s{S_T2}, {LDS_VT-LDS_V}, s{S_T2}")
        for ks in range(4):
            e(f"v_add_u32 v{ks}, s{S_T1}, v{V_KA+ks}")
        for dt in range(8):
            e(f"v_add_u32 v{VTA+dt}, s{S_T2}, v{V_VA+dt}")
        order = cfg.get("order", "mid")
        pend = [dV0, dKT, dK1, dVT, dV1]
        nv = 8
        nearly = {"late": 0, "mid": 3, "early": 5}[order]
        for lines in pend[:nearly]:
            self.emit_all(lines)
            nv += sum(1 for x in lines if x.startswith("buffer_load"))
        pend = pend[nearly:]
        self.stamp()
        for k in range(8):
            e(f"s_waitcnt vmcnt({nv + 7 - k})")
            if k == 0:
                self.stamp()
            if k % 2 == 1 and pend:
                lines = pend.pop(0)
                self.emit_all(lines)
                nv += sum(1 for x in lines if x.startswith("buffer_load"))
            for x in range(4):
                src = 128 + 4 * k + x
                t = 176 + 2 * x
                e(f"v_lshlrev_b32 v{t}, 16, v{src}")
                e(f"v_and_b32 v{t+1}, 0xffff0000, v{src}")
            for x in range(4):
                t = 176 + 2 * x
                e(f"v_pk_mul_f32 v[{t}:{t+1}], v[{t}:{t+1}], s[{S_C}:{S_C+1}]")
            o = 184 + 4 * (k % 2)
            for x in range(4):
                t = 176 + 2 * x
                e(f"v_cvt_pk_bf16_f32 v{o+x}, v{t}, v{t+1}")
            e(f"ds_write_b128 v{4+k%4}, v[{o}:{o+3}] offset:{(k>>2)*4096+(k&3)*1024}")
        for lines in pend:
            self.emit_all(lines)
        e(f"s_waitcnt vmcnt(16) lgkmcnt(0)")
        e("s_barrier")
        self.stamp()
        for ks in range(4):
            e(f"ds_read_b128 a[{A_QA+4*ks}:{A_QA+4*ks+3}], v{48+ks}")
            e(self.k_read(ks, 0))
        for ks in range(4):
            e(self.k_read(4 + ks, 0))
        for ks in range(4):
            e(f"ds_read_b128 a[{A_QA+16+4*ks}:{A_QA+16+4*ks+3}], v{48+ks} offset:4096")
        for qb in range(2):
            for ks in range(4):
                e(f"ds_read_b128 a[{A_QB+16*qb+4*ks}:{A_QB+16*qb+4*ks+3}], v{52+ks} offset:{qb*4096}")
        e(f"s_mov_b32 s{S_T0}, {f32bits(-1e9*1.4426950408889634):#x}")
        bias1 = []
        for g in range(4):
            for k in range(2):
                src = 16 + 2 * g + k
                d0 = V_ST + 4 * g + 2 * k
                bias1.append(f"v_lshlrev_b32 v{d0}, 16, v{src}")
                bias1.append(f"v_and_b32 v{d0+1}, 0xffff0000, v{src}")
        for i in range(16):
            bias1.append(f"v_sub_f32 v{V_ST+i}, 1.0, v{V_ST+i}")
        self.emit_all(bias1[:16])
        mf = self.qk_mfmas("A", cin="0") + self.qk_mfmas("B", cin="0")
        pre = {}
        for k in range(4):
            pre[k] = [f"s_waitcnt lgkmcnt({min(15, 24-2*(k+1))})"]
        for k in range(4):
            pre[4 + k] = [f"s_waitcnt lgkmcnt({min(15, 24-8-(k+1))})"]
        for k in range(4):
            pre[8 + k] = [f"s_waitcnt lgkmcnt({24-12-(k+1)})"]
        pre[16] = ["s_waitcnt lgkmcnt(4)"]
        pre[24] = ["s_waitcnt lgkmcnt(0)"]
        gaps = {}

        def put(g, s):
            gaps.setdefault(g, []).append(s)
        for g, s in spread(bias1[16:], 0, 7):
            put(g, s)
        for g, s in spread(self.dma_k_stage(2), 8, 17):
            put(g, s)
        tA = self.blk("A")["IT"]
        bias2 = [f"v_fma_f32 v{V_ST+i}, v{V_ST+i}, s{S_T0}, v{tA+6+i//8}" for i in range(16)]
        for g, s in spread(self.ism_part1("A") + bias2, 19, 31):
            put(g, s)
        self.emit_sched(mf, gaps, pre)
        e(f"s_waitcnt vmcnt(8)")
        e("s_barrier")
        self.stamp()
        for i in range(8):
            e(self.k_read(i, 0, dst=A_KT, addr=0, off=0))
        for dt in range(8):
            self.emit_all(self.v_reads(dt, 0))
        p2a = self.ism_part2("A")
        self.emit_all(p2a[:16])
        mf = self.qk_mfmas("A", kf=A_KT, cin="self", dst=V_ST) + self.pv_mfmas("A")
        pre = {0: ["s_waitcnt lgkmcnt(15)"], 16: ["s_waitcnt lgkmcnt(15)", "s_nop 1"]}
        gaps = {}
        rd = [self.k_read(i, 1, dst=A_KT) for i in range(8)]
        for g, s in spread(p2a[16:], 0, 15):
            put(g, s)
        dm = self.dma_v_stage(2) + self.dma_k_stage(3) + self.dma_k_stage(0) + self.dma_v_stage(3)
        npf = cfg["pf"]
        if npf:
            e(f"s_cmp_eq_u32 s{S_QH}, 0")
            e(f"s_cselect_b32 s{S_PF}, s{S_K}, s{S_V}")
            e(f"s_cselect_b32 s{S_PF+1}, s{S_K+1}, s{S_V+1}")
            e(f"s_mov_b32 s{S_PF+2}, 524288")
            e(f"s_mov_b32 s{S_PF+3}, 0x00020000")
            e(f"s_add_u32 s{S_PFO}, s{S_WB}, {5*16384}")
            e(f"v_mul_u32_u24 v{V_PF}, {cfg['pfstride']}, v{ln}")
            for k in range(npf):
                dm += [self.pf_load(), f"s_add_u32 s{S_PFO}, s{S_PFO}, 16384"]
        rdv = []
        for dt in range(8):
            rdv += self.v_reads(dt, 0, dst=A_VT, addr=VTA, off=0)
        for g, s in spread(self.ism_part1("B"), 16, 23):
            put(g, s)
        smt = self.sm_stream("A", src=V_ST)
        h0 = [s for g, s in smt if g < 17]
        h1 = [s for g, s in smt if g >= 17]
        h0n = []
        for k, s in enumerate(h0):
            h0n.append(s)
            if s.startswith("v_exp") and k + 1 < len(h0) and h0[k + 1].startswith("v_cvt"):
                h0n.append("s_nop 0")
        for g, s in spread(h0n, 24, 33):
            put(g, s)
        for k, s in enumerate(h1):
            put(34, s)
            if s.startswith("v_exp") and k + 1 < len(h1) and h1[k + 1].startswith("v_cvt"):
                put(34, "s_nop 0")
        for g, s in spread(rdv, 0, 15):
            put(g, s)
        for g, s in spread(rd, 16, 31):
            put(g, s)
        for g, s in spread(dm, 0, 33):
            put(g, s)
        self.emit_sched(mf, gaps, pre)
        e("s_waitcnt lgkmcnt(0)")
        self.stamp()
        carry = spread(self.ism_part2("B"), 0, 29)
        p1 = 1 if npf else 0
        carry = self.iteration(0, carry, vm=16 + npf, pva_vf=A_VT, first=True)
        carry = self.iteration(1, carry, vm=8 + npf + 8 + p1)
        carry = self.iteration(2, carry, vm=npf + 2 * (8 + p1))
        vms = 2 * (8 + p1) + p1
        t = carry
        m0 = 3
        while m0 < cfg.get("slowN", 0):
            for m in range(m0, m0 + 4):
                t = self.iteration(m, t, vm=vms)
            m0 += 4
        e(f"s_mov_b32 s{S_LOOP}, {(27 - m0) // 4}")
        self.label("L_loop")
        for m in range(m0, m0 + 4):
            le = None
            if m == m0 + 3:
                le = [f"s_sub_u32 s{S_LOOP}, s{S_LOOP}, 1", f"s_cmp_lg_u32 s{S_LOOP}, 0", "s_cbranch_scc1 L_loop"]
            t = self.iteration(m, t, loop_end=le, vm=vms)
        t = self.iteration(27, t, vm=vms)
        t = self.iteration(28, t, dma=False, vm=vms)
        self.stamp()
        t = self.iteration(29, t, dma=False, vm=(8 + p1) + p1)
        t = self.iteration(30, t, dma=False, vm=0, kread=False, bar=cfg["lastbar"])
        self.stamp()
        self.c("---- final PV")
        ds = [(g, s) for g, s in t if s.startswith("ds_")]
        sm = [(g, s) for g, s in t if not s.startswith("ds_")]
        self.emit_all([s for g, s in ds])
        e(f"v_lshlrev_b32 v32, 4, v{ln}")
        e(f"s_lshl_b32 s{S_T0}, s{S_W}, 14")
        e(f"s_xor_b32 s{S_T1}, s{S_T0}, 16384")
        e(f"v_add_u32 v33, s{S_T0}, v32")
        e(f"v_add_u32 v34, s{S_T1}, v32")
        e(f"s_lshl_b32 s{S_T0}, s{S_W}, 10")
        e(f"s_add_u32 s{S_T0}, s{S_T0}, {LDS_ML}")
        e(f"s_xor_b32 s{S_T1}, s{S_T0}, 1024")
        e(f"v_add_u32 v35, s{S_T0}, v32")
        e(f"v_add_u32 v36, s{S_T1}, v32")
        pa, pb = self.pv_mfmas("A", A_VT), self.pv_mfmas("B", A_VT)
        mf = pa[:9] + pb + pa[9:]
        gaps = {}
        sml = []
        for k, (g, s) in enumerate(sm):
            sml.append(s)
            if s.startswith("v_exp") and k + 1 < len(sm) and sm[k + 1][1].startswith("v_cvt"):
                sml.append("s_nop 0")
        for g, s in spread(sml, 0, 8):
            put(g, s)
        put(9, f"s_lshl_b32 s{S_T2}, s{S_W}, 14")
        put(9, f"s_add_u32 s{S_T2}, s{S_T2}, {LDS_V}")
        put(9, f"v_and_b32 v42, 15, v{ln}")
        put(10, f"v_lshrrev_b32 v43, 4, v{ln}")
        put(10, f"v_mul_u32_u24 v40, 272, v42")
        put(11, f"v_and_b32 v44, 1, v43")
        put(11, f"v_lshl_add_u32 v40, v44, 5, v40")
        put(30, f"v_lshrrev_b32 v44, 1, v43")
        put(31, f"v_lshl_add_u32 v40, v44, 4, v40")
        put(31, f"v_add_u32 v40, s{S_T2}, v40")
        put(32, f"v_mul_u32_u24 v41, 272, v43")
        put(32, f"v_lshl_add_u32 v41, v42, 4, v41")
        put(33, f"v_add_u32 v41, s{S_T2}, v41")
        put(20, f"v_mov_b32 v8, v{V_MB}")
        put(20, f"v_mov_b32 v9, v{V_MB+1}")
        put(21, f"v_mov_b32 v10, v{V_LB}")
        for r4 in range(16):
            mi = 9 + 9 * (r4 // 8) + r4 % 8
            put(mi + 3, f"ds_write_b128 v33, a[{A_OB+4*r4}:{A_OB+4*r4+3}] offset:{r4*1024}")
        put(29, f"v_mov_b32 v11, v{V_LB+4}")
        put(30, f"ds_write_b128 v35, v[8:11]")
        self.emit_sched(mf, gaps, pre={0: ["s_waitcnt lgkmcnt(0)"], 9: ["s_nop 1"]})
        e("s_waitcnt lgkmcnt(0)")
        e("s_barrier")
        self.stamp()
        e(f"ds_read_b128 v[8:11], v36")
        for r4 in range(16):
            e(f"ds_read_b128 v[{128+4*r4}:{128+4*r4+3}], v34 offset:{r4*1024}")
        e("s_waitcnt lgkmcnt(15)")
        for qb in range(2):
            e(f"v_max_f32 v{12+qb}, v{V_MA+qb}, v{8+qb}")
        for qb in range(2):
            e(f"v_sub_f32 v{24+qb}, v{V_MA+qb}, v{12+qb}")
            e(f"v_sub_f32 v{26+qb}, v{8+qb}, v{12+qb}")
        for qb in range(2):
            e(f"v_exp_f32 v{24+qb}, v{24+qb}")
            e(f"v_exp_f32 v{26+qb}, v{26+qb}")
        e("s_nop 0")
        for qb in range(2):
            e(f"v_mul_f32 v{28+qb}, v{V_LA+4*qb}, v{24+qb}")
        for qb in range(2):
            e(f"v_fma_f32 v{28+qb}, v{10+qb}, v{26+qb}, v{28+qb}")
        for qb in range(2):
            e(f"v_rcp_f32 v{28+qb}, v{28+qb}")
        e("s_nop 0")
        for qb in range(2):
            e(f"v_mul_f32 v{16+4*qb}, v{24+qb}, v{28+qb}")
            e(f"v_mul_f32 v{18+4*qb}, v{26+qb}, v{28+qb}")
        for qb in range(2):
            e(f"v_mov_b32 v{17+4*qb}, v{16+4*qb}")
            e(f"v_mov_b32 v{19+4*qb}, v{18+4*qb}")
        stf = cfg.get("stf", "")
        e(f"s_lshl_b32 s{S_T0}, s{S_W}, 13")
        e(f"s_add_u32 s{S_T1}, s{S_T0}, 4096")
        log = ["ml"] + [f"o{r}" for r in range(16)]
        def wait(tag):
            n = len(log) - 1 - log.index(tag)
            e(f"s_waitcnt lgkmcnt({min(15, n)})")
        for qb in range(2):
            fa, fb = 16 + 4 * qb, 18 + 4 * qb
            for dp in range(4):
                gi = 4 * qb + dp
                base = 32 * qb + 8 * dp
                r4 = base // 4
                wait(f"o{r4+1}")
                pk = 48 + 4 * (gi % 4)
                for k in range(0, 8, 2):
                    o = 128 + base + k
                    e(f"v_pk_mul_f32 v[{o}:{o+1}], v[{o}:{o+1}], v[{fb}:{fb+1}]")
                for k in range(0, 8, 2):
                    o = 128 + base + k
                    oa = V_OA + base + k
                    e(f"v_pk_fma_f32 v[{o}:{o+1}], v[{oa}:{oa+1}], v[{fa}:{fa+1}], v[{o}:{o+1}]")
                for k in range(4):
                    o = 128 + base + 2 * k
                    e(f"v_cvt_pk_bf16_f32 v{pk+k}, v{o}, v{o+1}")
                if qb == 1 and dp >= 2:
                    for k in (2 * (dp - 2), 2 * (dp - 2) + 1):
                        wait(f"r{k}")
                        e(f"buffer_store_dwordx4 v[{64+4*k}:{67+4*k}], v32, s[{S_O}:{S_O+3}], s{S_T0} offen offset:{k*1024}{stf}")
                else:
                    e("s_nop 1")
                e(f"v_permlane16_swap_b32 v{pk}, v{pk+2}")
                e(f"v_permlane16_swap_b32 v{pk+1}, v{pk+3}")
                e("s_nop 1")
                e(f"ds_write_b128 v40, v[{pk}:{pk+3}] offset:{qb*16*272+dp*64}")
                log.append(f"w{gi}")
                if qb == 1 and dp == 0:
                    for k in range(4):
                        e(f"ds_read_b128 v[{64+4*k}:{67+4*k}], v41 offset:{k*4*272}")
                        log.append(f"r{k}")
        for k in range(4, 8):
            e(f"ds_read_b128 v[{64+4*k}:{67+4*k}], v41 offset:{k*4*272}")
            log.append(f"r{k}")
        for k in range(4, 8):
            wait(f"r{k}")
            e(f"buffer_store_dwordx4 v[{64+4*k}:{67+4*k}], v32, s[{S_O}:{S_O+3}], s{S_T1} offen offset:{(k%4)*1024}{stf}")
        if self.stamps:
            self.stamp()
            e("s_waitcnt vmcnt(0)")
            self.stamp()
            e("s_memrealtime s[100:101]")
            e("s_waitcnt lgkmcnt(0)")
            if 'dbgst' in self.exp:
                e("s_cmp_lg_u32 s2, 100")
                e("s_cbranch_scc1 L_done")
                e(f"s_cmp_lg_u32 s{S_W}, 0")
                e("s_cbranch_scc1 L_done")
                e("s_mov_b32 s8, s18"); e("s_mov_b32 s9, s19"); e("s_mov_b32 s10, 256"); e("s_mov_b32 s11, 0x00020000")
                e("v_mov_b32 v4, 0")
                e(f"v_cmp_eq_u32 vcc, 0, v{ln}")
                e("s_and_saveexec_b64 s[12:13], vcc")
                for k in range(1, self.nstamp):
                    e(f"s_sub_u32 s3, s{72+2*k}, s72")
                    e("v_mov_b32 v6, s3")
                    e(f"buffer_store_dword v6, v4, s[8:11], 0 offen offset:{4*k}")
                e("s_sub_u32 s3, s100, s98")
                e("v_mov_b32 v6, s3")
                e(f"buffer_store_dword v6, v4, s[8:11], 0 offen offset:0")
            else:
                e("s_mov_b32 s8, s18"); e("s_mov_b32 s9, s19"); e("s_mov_b32 s10, 0x1000000"); e("s_mov_b32 s11, 0x00020000")
                e("s_lshl_b32 s3, s2, 2")
                e(f"s_add_u32 s3, s3, s{S_W}")
                e("s_lshl_b32 s3, s3, 7")
                e("v_mov_b32 v4, s3")
                e(f"v_cmp_eq_u32 vcc, 0, v{ln}")
                e("s_and_saveexec_b64 s[12:13], vcc")
                for k in range(self.nstamp):
                    e(f"s_sub_u32 s3, s{72+2*k}, s72")
                    e("v_mov_b32 v6, s3")
                    e(f"buffer_store_dword v6, v4, s[8:11], 0 offen offset:{4*k}")
                e("v_mov_b32 v6, s100")
                e(f"buffer_store_dword v6, v4, s[8:11], 0 offen offset:{4*16}")
                e("v_mov_b32 v6, s98")
                e(f"buffer_store_dword v6, v4, s[8:11], 0 offen offset:{4*17}")
        self.label("L_done")
        e("s_endpgm")
        for u, X, src in self.stubs:
            self.label(f"L_stub{u}")
            if src is not None:
                S = self.blk(X)["S"]
                for i in range(16):
                    e(f"v_mov_b32 v{S+i}, v{src+i}")
            e(f"s_call_b64 s[{S_RET}:{S_RET+1}], L_slow{X}")
            e(f"s_branch L_back{u}")
        self.slow_path("A")
        self.slow_path("B")
        self.label("L_codeend")
        L.append('.section .rodata,"a"')
        L.append(".p2align 6")
        L.append(f".amdhsa_kernel {KNAME}")
        L.append("  .amdhsa_next_free_vgpr 512")
        L.append("  .amdhsa_next_free_sgpr 102")
        L.append("  .amdhsa_accum_offset 256")
        L.append("  .amdhsa_group_segment_fixed_size 0")
        L.append("  .amdhsa_kernarg_size 72")
        L.append("  .amdhsa_user_sgpr_count 2")
        L.append("  .amdhsa_user_sgpr_kernarg_segment_ptr 1")
        L.append("  .amdhsa_system_sgpr_workgroup_id_x 1")
        L.append(".end_amdhsa_kernel")
        return "\n".join(L) + "\n"


if __name__ == "__main__":
    ap = argparse.ArgumentParser()
    ap.add_argument("-o", default="k10.s")
    ap.add_argument("--no-nt", action="store_true")
    ap.add_argument("--stamps", action="store_true")
    ap.add_argument("--no-pf", action="store_true")
    ap.add_argument("--exp", default="")
    ap.add_argument("--cfg", default="")
    a = ap.parse_args()
    cfg = eval("dict(" + a.cfg + ")") if a.cfg else None
    g = Gen(nt=not a.no_nt, stamps=a.stamps, code_pf=not a.no_pf, exp=a.exp, cfg=cfg)
    open(a.o, "w").write(g.build())
```

```python
import sys, struct, argparse

KNAME = "standalone__tree_speculative_verify_tree_attention_over_candidate_token_tree__sampling_kernel"
HEADER = open("standalone__tree_speculative_verify_tree_attention_over_candidate_token_tree__sampling.s.ref").read().split("; Override launch")[0]


def f32bits(x):
    return struct.unpack("<I", struct.pack("<f", x))[0]


V_OA = 64
V_SA, V_SB = 128, 144
V_CA, V_CB = 160, 168
V_PA, V_PB = 176, 184
V_EA, V_EB = 192, 196
V_LA, V_LB = 200, 208
V_MA, V_MB = 216, 218
V_XA, V_XB = 220, 221
V_LANE = 222
V_KA = 224
V_VA = 228
V_DK = 236
V_DV = 240
V_ONE = 244
V_SL = 0
V_ST = 32
V_IT = 48
VTA = 248
A_OB = 0
A_QA, A_QB = 64, 96
A_KF = 128
A_VF = 160
A_VT = 192
A_KT = 224
S_K, S_V, S_Q, S_KT, S_VT, S_M, S_O = 20, 24, 28, 32, 36, 40, 44
S_W, S_I, S_J = 48, 49, 50
S_KOFF, S_VOFF = 51, 52
S_WB = 53
S_LOOP = 54
S_THR = 55
S_T4 = 59
S_PFO = 56
S_PF = 28
V_PF = 242
V_PFD = 243
S_RET = 60
S_T0, S_T1, S_T2, S_T3 = 62, 63, 64, 65
S_BH, S_QH = 66, 67
S_C = 68
S_PC = 70

LDS_V = 65536
LDS_KT = 131072
LDS_VT = 139264
LDS_ML = 147456
BIAS = 10.0
SCALE = (128 ** -0.5) * 1.4426950408889634
NG = 68
G_PVA, G_QKB, G_PVB = 16, 34, 50


def spread(ops, g0, g1):
    n = len(ops)
    k = g1 - g0 + 1
    return [(g0 + (i * k) // n, op) for i, op in enumerate(ops)]


class Gen:
    def __init__(self, nt=True, code_pf=True, stamps=False, exp="", cfg=None):
        self.L = []
        self.nt = " nt" if nt else ""
        self.code_pf = code_pf
        self.uid = 0
        self.stubs = []
        self.stamps = stamps
        self.nstamp = 0
        self.exp = exp
        self.cfg = dict(sma=22, smb=56, bar=5, stf=" nt",
                        kread=[7, 9, 11, 15, 17, 19, 21, 23],
                        vread=[29, 33, 35, 37, 41, 43, 45, 49, 51, 53, 55, 57, 59, 61, 61, 63],
                        dma=[13, 20, 27, 31, 39, 47, 54, 65], lastbar=27, pf=0, pfgap=67, pfstride=64, pfpol=" nt")
        if cfg:
            self.cfg.update(cfg)

    def e(self, s):
        self.L.append("  " + s)

    def label(self, s):
        self.L.append(s + ":")

    def c(self, s):
        self.L.append("  ; " + s)

    def stamp(self):
        if self.stamps:
            k = self.nstamp
            self.nstamp += 1
            assert k < 13
            self.e(f"s_memtime s[{72+2*k}:{73+2*k}]")

    def blk(self, X):
        if X == "A":
            return dict(S=V_SA, C=V_CA, P=V_PA, E=V_EA, L=V_LA, M=V_MA, Q=A_QA, IT=V_IT, X=V_XA)
        return dict(S=V_SB, C=V_CB, P=V_PB, E=V_EB, L=V_LB, M=V_MB, Q=A_QB, IT=V_IT + 8, X=V_XB)

    def qk_mfmas(self, X, kf=A_KF, cin=None, dst=None):
        r = self.blk(X)
        S = r["S"] if dst is None else dst
        Q = r["Q"]
        out = []
        for qb in range(2):
            for kt in range(2):
                s = S + 8 * qb + 4 * kt
                for ks in range(4):
                    if ks == 0 and cin != "self":
                        c = f"v[{r['C']+4*qb}:{r['C']+4*qb+3}]" if cin is None else cin
                    else:
                        c = f"v[{s}:{s+3}]"
                    k = kf + 4 * (4 * kt + ks)
                    q = Q + 4 * (4 * qb + ks)
                    out.append(f"v_mfma_f32_16x16x32_bf16 v[{s}:{s+3}], a[{k}:{k+3}], a[{q}:{q+3}], {c}")
        return out

    def pv_mfmas(self, X, vf=A_VF):
        r = self.blk(X)
        P, Lr = r["P"], r["L"]
        out = []
        for qb in range(2):
            grp = []
            for dt in range(8):
                f = vf + 4 * dt
                ob = 32 * qb + 4 * dt
                if X == "A":
                    o = f"v[{V_OA+ob}:{V_OA+ob+3}]"
                else:
                    o = f"a[{A_OB+ob}:{A_OB+ob+3}]"
                grp.append(f"v_mfma_f32_16x16x32_bf16 {o}, a[{f}:{f+3}], v[{P+4*qb}:{P+4*qb+3}], {o}")
            l = f"v[{Lr+4*qb}:{Lr+4*qb+3}]"
            grp.append(f"v_mfma_f32_16x16x32_bf16 {l}, v[{V_ONE}:{V_ONE+3}], v[{P+4*qb}:{P+4*qb+3}], {l}")
            out += grp
        return out

    def sm_stream(self, X, src=None):
        r = self.blk(X)
        S, P, E, XX = r["S"], r["P"], r["E"], r["X"]
        if src is not None:
            S = src
        out = []
        for e in range(16):
            out.append((2 * e, f"v_exp_f32 v{E+e%4}, v{S+e}"))
            if e % 2 == 1:
                k = e // 2
                out.append((2 * e + 1, f"v_cvt_pk_bf16_f32 v{P+k}, v{E+(e-1)%4}, v{E+e%4}"))
                if k == 3:
                    out.append((2 * e - 1, f"v_or3_b32 v{XX}, v{P}, v{P+1}, v{P+2}"))
                if k == 5:
                    out.append((2 * e - 1, f"v_or3_b32 v{XX}, v{XX}, v{P+3}, v{P+4}"))
                if k == 7:
                    out.append((2 * e - 1, f"v_or3_b32 v{XX}, v{XX}, v{P+5}, v{P+6}"))
        out.append((33, f"v_bitop3_b32 v{XX}, v{XX}, v{P+7}, s{S_THR} bitop3:0xa8"))
        out.append((35, f"v_cmp_ne_u32 vcc, 0, v{XX}"))
        self.uid += 1
        u = self.uid
        self.stubs.append((u, X, src))
        out.append((37, f"s_cbranch_vccnz L_stub{u}\nL_back{u}:"))
        out.sort(key=lambda x: x[0])
        return out

    def rowmax(self, S, t, dst, floor0=False):
        ops = [
            f"v_max3_f32 v{t}, v{S}, v{S+1}, v{S+2}",
            f"v_max3_f32 v{t+1}, v{S+3}, v{S+4}, v{S+5}",
            f"v_max3_f32 v{t}, v{t}, v{S+6}, v{S+7}",
            f"v_max_f32 v{t}, v{t}, v{t+1}",
            f"v_mov_b32 v{t+1}, v{t}",
            "s_nop 1",
            f"v_permlane16_swap_b32 v{t}, v{t+1}",
            "s_nop 1",
            f"v_max_f32 v{t}, v{t}, v{t+1}",
            f"v_mov_b32 v{t+1}, v{t}",
            "s_nop 1",
            f"v_permlane32_swap_b32 v{t}, v{t+1}",
            "s_nop 1",
        ]
        ops.append(f"v_max_f32 v{t}, v{t}, v{t+1}")
        ops.append(f"v_add_f32 v{dst}, {f32bits(BIAS):#x}, v{t}")
        if floor0:
            ops.append(f"v_max_f32 v{dst}, 0, v{dst}")
        return ops

    def ism_part1(self, X):
        r = self.blk(X)
        S, M, t = r["S"], r["M"], r["IT"]
        a = self.rowmax(S, t, M)
        b = self.rowmax(S + 8, t + 3, M + 1)
        ops = []
        for x, y in zip(a, b):
            if x.startswith("s_nop"):
                ops.append("s_nop 0")
            else:
                ops += [x, y]
        ops.append(f"v_sub_f32 v{t+6}, 0, v{M}")
        ops.append(f"v_sub_f32 v{t+7}, 0, v{M+1}")
        return ops

    def ism_part2(self, X):
        r = self.blk(X)
        S, C, P, E, M, t = r["S"], r["C"], r["P"], r["E"], r["M"], r["IT"]
        ops = []
        for i in range(16):
            ops.append(f"v_sub_f32 v{S+i}, v{S+i}, v{M+i//8}")
        ex = []
        for e in range(17):
            if e < 16:
                ex.append(f"v_exp_f32 v{E+e%4}, v{S+e}")
            if e < 8:
                ex.append(f"v_mov_b32 v{C+e}, v{t+6+e//4}")
            elif e == 16:
                ex.append("s_nop 0")
            p = e - 1
            if p >= 0 and p % 2 == 1:
                ex.append(f"v_cvt_pk_bf16_f32 v{P+p//2}, v{E+(p-1)%4}, v{E+p%4}")
        return ops + ex

    def emit_line(self, s):
        if "\n" in s:
            for x in s.split("\n"):
                self.emit_line(x)
            return
        if s.endswith(":"):
            self.label(s[:-1])
        else:
            self.e(s)

    def k_read(self, idx, slot, dst=A_KF, addr=V_KA, off=None):
        kt, ks = idx // 4, idx % 4
        o = (slot * 16384 if off is None else off) + kt * 4096
        return f"ds_read_b128 a[{dst+4*idx}:{dst+4*idx+3}], v{addr+ks} offset:{o}"

    def v_reads(self, dt, slot, dst=A_VF, addr=V_VA, off=None):
        o = slot * 16384 if off is None else off
        f = dst + 4 * dt
        return [f"ds_read_b64_tr_b16 a[{f}:{f+1}], v{addr+dt} offset:{o}",
                f"ds_read_b64_tr_b16 a[{f+2}:{f+3}], v{addr+dt} offset:{o+4096}"]

    def dma_k(self, q, soff=S_KOFF, srd=S_K, v=None):
        vv = V_DK + q if v is None else v
        return f"buffer_load_dwordx4 v{vv}, s[{srd}:{srd+3}], s{soff} offen offset:{q*1024}{self.nt} lds"

    def dma_v(self, q, soff=S_VOFF, srd=S_V, v=None):
        vv = V_DV + (q & 1) if v is None else v
        return f"buffer_load_dwordx4 v{vv}, s[{srd}:{srd+3}], s{soff} offen offset:{q*1024}{self.nt} lds"

    def pf_load(self):
        return f"buffer_load_dword v{V_PFD}, v{V_PF}, s[{S_PF}:{S_PF+3}], s{S_PFO} offen{self.cfg['pfpol']}"

    def dma_k_stage(self, slot):
        return ([f"s_add_u32 m0, s{S_WB}, {slot*16384}", "s_nop 0"] + [self.dma_k(q) for q in range(4)]
                + [f"s_add_u32 s{S_KOFF}, s{S_KOFF}, 16384"])

    def dma_v_stage(self, slot):
        return ([f"s_add_u32 m0, s{S_WB}, {LDS_V+slot*16384}", "s_nop 0"] + [self.dma_v(q) for q in range(4)]
                + [f"s_add_u32 s{S_VOFF}, s{S_VOFF}, 16384"])

    def emit_all(self, lines):
        for s in lines:
            self.emit_line(s)

    def emit_sched(self, mfmas, gaps, pre=None):
        pre = pre or {}
        n = len(mfmas)
        for k in range(n):
            for s in pre.get(k, []):
                self.emit_line(s)
            self.e(mfmas[k])
            for s in gaps.get(k, []):
                self.emit_line(s)
        for k in sorted(g for g in gaps if g >= n):
            for s in gaps[k]:
                self.emit_line(s)

    def iteration(self, m, carry, dma=True, vm=16, pva_vf=None, kread=True, loop_end=None, bar=None, first=False):
        cfg = self.cfg
        mm = m % 4
        KB, VB = (A_KF, A_KT), (A_VF, A_VT)
        self.c(f"---- iteration {m} (mod 4 = {mm})")
        items = []

        def put(g, s, pri=None):
            if 'novalu' in self.exp and s.startswith('v_'):
                return
            if 'nods' in self.exp and s.startswith('ds_'):
                return
            if pri is None:
                if s.startswith("v_") or s.startswith("s_nop"):
                    pri = 6
                elif s.startswith("ds_") and m < cfg.get("slowN", 0) and cfg.get("slowvf", 1):
                    pri = 6.5
                elif s.startswith("ds_") or s.startswith("buffer_"):
                    pri = 3
                else:
                    pri = 2
            items.append((g, pri, len(items), s))

        kf, vf = KB[(m + 1) % 2], VB[m % 2]
        mf = (self.qk_mfmas("A", kf) + self.pv_mfmas("A", vf if pva_vf is None else pva_vf)
              + self.qk_mfmas("B", kf) + self.pv_mfmas("B", vf))
        assert len(mf) == NG
        for g, s in carry:
            put(g, s)
        for g, s in self.sm_stream("A"):
            put(cfg["sma"] + g, s)
        for g, s in self.sm_stream("B"):
            put(cfg["smb"] + g, s)
        bg = cfg["bar"] if bar is None else bar
        if dma and 'nodma' not in self.exp:
            dm_ = cfg["dma"] if (m >= cfg.get("slowN", 0) or not cfg.get("slowdma", 1)) else [7, 9, 11, 13, 15, 17, 19, 20]
            gk, gv = dm_[:4], dm_[4:]
            assert gk[0] - 1 > bg and gv[0] - 1 >= gk[3] and gv[3] + 1 < NG
            put(gk[0] - 1, f"s_add_u32 m0, s{S_WB}, {((mm+1)%4)*16384}")
            for q, g in enumerate(gk):
                put(g, self.dma_k(q))
            put(gv[0] - 1, f"s_add_u32 m0, s{S_WB}, {LDS_V+mm*16384}", 4 if gv[0] - 1 == gk[3] else None)
            put(gk[3] + 1, f"s_add_u32 s{S_KOFF}, s{S_KOFF}, 16384")
            for q, g in enumerate(gv):
                put(g, self.dma_v(q))
            put(gv[3] + 1, f"s_add_u32 s{S_VOFF}, s{S_VOFF}, 16384")
            if cfg["pf"]:
                assert cfg["pfgap"] > gv[3]
                put(cfg["pfgap"], self.pf_load())
                put(cfg["pfgap"], f"s_add_u32 s{S_PFO}, s{S_PFO}, 16384", 4)
        put(bg, f"s_waitcnt vmcnt({vm}) lgkmcnt(0)", 0)
        if 'nobar' not in self.exp:
            put(bg, "s_barrier", 1)
        if kread:
            for i in range(8):
                assert bg < cfg["kread"][i] < NG
                sh_ = 1 if (m < cfg.get("slow2N", 0) and cfg["kread"][i] % 2 == 1) else 0
                put(cfg["kread"][i] + sh_, self.k_read(i, (mm + 2) % 4, dst=KB[m % 2]))
        vr = []
        for dt in range(8):
            vr += self.v_reads(dt, (mm + 1) % 4, dst=VB[(m + 1) % 2])
        for k, s in enumerate(vr):
            g = cfg["vread"][k]
            assert bg < g < NG and g >= 26 + k // 2
            if m < cfg.get("slow2N", 0) and g % 2 == 1:
                g += 1
            put(g, s)
        if loop_end:
            put(NG - 3, loop_end[0])
            put(NG - 1, loop_end[1], 5)
            put(NG - 1, loop_end[2], 9)
        items.sort()
        gaps = {}
        nxt = []
        for g, pri, _, s in items:
            if g >= NG:
                nxt.append((g - NG, s))
            else:
                gaps.setdefault(g, []).append(s)
        pre = {}
        if not first:
            assert max(cfg["kread"]) < min(cfg["vread"])
            pre[0] = ["s_waitcnt lgkmcnt(15)"]
            if bg >= 16:
                pre[16] = ["s_waitcnt lgkmcnt(0)"]
        self.emit_sched(mf, gaps, pre)
        return nxt

    def slow_path(self, X):
        r = self.blk(X)
        S, C, P, Lr, M = r["S"], r["C"], r["P"], r["L"], r["M"]
        t = V_SL
        self.label(f"L_slow{X}")
        e = self.e
        for qb in range(2):
            d = t + 3
            f = t + 4
            self.emit_all(self.rowmax(S + 8 * qb, t, d, floor0=True))
            e(f"v_add_f32 v{M+qb}, v{M+qb}, v{d}")
            e(f"v_exp_f32 v{f}, -v{d}")
            e(f"v_sub_f32 v{t+5}, 0, v{M+qb}")
            for i in range(4):
                e(f"v_mov_b32 v{C+4*qb+i}, v{t+5}")
            e(f"v_mul_f32 v{Lr+4*qb}, v{Lr+4*qb}, v{f}")
            if X == "A":
                for i in range(32):
                    o = V_OA + 32 * qb + i
                    e(f"v_mul_f32 v{o}, v{o}, v{f}")
            else:
                for i in range(0, 32, 4):
                    for k in range(4):
                        e(f"v_accvgpr_read_b32 v{t+8+k}, a{A_OB+32*qb+i+k}")
                    for k in range(4):
                        e(f"v_mul_f32 v{t+8+k}, v{t+8+k}, v{f}")
                    for k in range(4):
                        e(f"v_accvgpr_write_b32 a{A_OB+32*qb+i+k}, v{t+8+k}")
            for i in range(0, 8, 4):
                for k in range(4):
                    e(f"v_sub_f32 v{t+8+k}, v{S+8*qb+i+k}, v{d}")
                for k in range(4):
                    e(f"v_exp_f32 v{t+8+k}, v{t+8+k}")
                e("s_nop 0")
                e(f"v_cvt_pk_bf16_f32 v{P+4*qb+i//2}, v{t+8}, v{t+9}")
                e(f"v_cvt_pk_bf16_f32 v{P+4*qb+i//2+1}, v{t+10}, v{t+11}")
        e("s_nop 1")
        e(f"s_setpc_b64 s[{S_RET}:{S_RET+1}]")

    def srd(self, d, lo, hi, off, size):
        e = self.e
        e(f"s_add_u32 s{d}, s{lo}, s{off}")
        e(f"s_addc_u32 s{d+1}, s{hi}, 0")
        e(f"s_mov_b32 s{d+2}, {size}")
        e(f"s_mov_b32 s{d+3}, 0x00020000")

    def build(self):
        e = self.e
        L = self.L
        cfg = self.cfg
        L.append(HEADER.rstrip())
        L.append("; @launch grid=(256,1,1) block=(256,1,1) lds=163840")
        L.append('.amdgcn_target "amdgcn-amd-amdhsa--gfx950"')
        L.append(".text")
        L.append(f".globl {KNAME}")
        L.append(".p2align 8")
        L.append(f".type {KNAME},@function")
        self.label(KNAME)
        self.stamp()
        if self.stamps:
            e("s_memrealtime s[98:99]")
        e("s_cmp_ge_u32 s2, 256")
        e("s_cbranch_scc1 L_done")
        e("s_load_dwordx8 s[4:11], s[0:1], 0")
        e("s_load_dwordx4 s[12:15], s[0:1], 32")
        e("s_load_dwordx2 s[16:17], s[0:1], 48")
        if self.stamps:
            e(f"s_load_dwordx2 s[18:19], s[0:1], {56 if 'dbgst' in self.exp else 64}")
        e(f"s_getpc_b64 s[{S_PC}:{S_PC+1}]")
        self.label("L_pcbase")
        e(f"v_lshrrev_b32 v1, 6, v0")
        e(f"v_and_b32 v{V_LANE}, 63, v0")
        ln = V_LANE
        if self.code_pf:
            e(f"v_lshlrev_b32 v13, 4, v0")
            e("s_cmp_ge_u32 s2, 32")
            e("s_cbranch_scc1 L_nopf")
            e("s_mov_b32 s3, L_codeend-L_pcbase-16")
            for k in range(cfg.get('npfc', 6)):
                e(f"v_min_u32 v12, s3, v13")
                e(f"global_load_dwordx4 v[24:27], v12, s[{S_PC}:{S_PC+1}]")
                e(f"v_add_u32 v13, 0x1000, v13")
            self.label("L_nopf")
        e("s_and_b32 s3, s2, 7")
        e(f"v_readfirstlane_b32 s{S_W}, v1")
        e(f"s_lshr_b32 s{S_BH}, s2, 4")
        e(f"s_lshl_b32 s{S_BH}, s{S_BH}, 3")
        e(f"s_add_u32 s{S_BH}, s{S_BH}, s3")
        if 'samebh' in self.exp:
            e(f"s_and_b32 s{S_BH}, s{S_BH}, 7")
        e(f"s_lshr_b32 s{S_QH}, s2, 3")
        e(f"s_and_b32 s{S_QH}, s{S_QH}, 1")
        e(f"s_lshr_b32 s{S_I}, s{S_W}, 1")
        e(f"s_and_b32 s{S_J}, s{S_W}, 1")
        e(f"s_lshl_b32 s{S_WB}, s{S_W}, 12")
        e(f"v_lshrrev_b32 v1, 4, v{ln}")
        e(f"v_and_b32 v2, 15, v{ln}")
        e(f"v_lshlrev_b32 v3, 8, v1")
        e(f"v_add_u32 v3, s{S_WB}, v3")
        for q in range(4):
            e(f"v_add_u32 v4, {4*q}, v1")
            e(f"v_xor_b32 v4, v4, v2")
            e(f"v_lshl_add_u32 v{V_DK+q}, v4, 4, v3")
        for q in range(2):
            e(f"v_add_u32 v4, {4*q}, v1")
            e(f"v_lshlrev_b32 v4, 1, v4")
            e(f"v_xor_b32 v4, v4, v2")
            e(f"v_lshl_add_u32 v{V_DV+q}, v4, 4, v3")
        e(f"v_lshlrev_b32 v7, 6, v2")
        e(f"v_lshl_add_u32 v7, v1, 3, v7")
        e(f"v_lshlrev_b32 v14, 4, v{ln}")
        e(f"s_lshl_b32 s{S_T0}, s{S_BH}, 16")
        e(f"s_lshl_b32 s{S_T1}, s{S_QH}, 15")
        e(f"s_add_u32 s{S_T0}, s{S_T0}, s{S_T1}")
        e(f"s_lshl_b32 s{S_T1}, s{S_BH}, 19")
        e(f"s_lshr_b32 s{S_T2}, s{S_BH}, 2")
        e(f"s_lshl_b32 s{S_T2}, s{S_T2}, 11")
        e(f"s_lshl_b32 s{S_T3}, s{S_W}, 13")
        e(f"s_mov_b32 s{S_KOFF}, 0")
        e(f"s_mov_b32 s{S_VOFF}, 0")
        e("s_waitcnt lgkmcnt(0)")
        self.stamp()
        self.srd(S_Q, 4, 5, S_T0, 32768)
        for k in range(4):
            e(f"buffer_load_dwordx4 v[{128+4*k}:{131+4*k}], v14, s[{S_Q}:{S_Q+3}], s{S_T3} offen offset:{k*1024}{self.nt}")
        e(f"s_add_u32 s{S_T3}, s{S_T3}, 4096")
        self.srd(S_K, 6, 7, S_T1, 524288)
        for k in range(4):
            e(f"buffer_load_dwordx4 v[{144+4*k}:{147+4*k}], v14, s[{S_Q}:{S_Q+3}], s{S_T3} offen offset:{k*1024}{self.nt}")
        self.emit_all(self.dma_k_stage(0))
        self.srd(S_M, 14, 15, S_T2, 2048)
        for qb in range(2):
            for kt in range(2):
                g = 2 * qb + kt
                e(f"buffer_load_dwordx2 v[{16+2*g}:{17+2*g}], v7, s[{S_M}:{S_M+3}], 0 offen offset:{qb*1024+kt*32}")
        self.srd(S_V, 8, 9, S_T1, 524288)
        e(f"s_lshl_b32 s{S_T1}, s{S_BH}, 13")
        self.srd(S_KT, 10, 11, S_T1, 8192)
        self.srd(S_VT, 12, 13, S_T1, 8192)
        self.srd(S_O, 16, 17, S_T0, 32768)
        e(f"s_lshl_b32 s{S_T4}, s{S_W}, 11")
        e(f"s_lshl_b32 s{S_T2}, s{S_J}, 3")
        e(f"v_lshlrev_b32 v8, 8, v1")
        e(f"v_add_u32 v8, s{S_T4}, v8")
        for q in range(2):
            e(f"v_add_u32 v9, s{S_T2}, v1")
            e(f"v_add_u32 v9, {4*q}, v9")
            e(f"v_xor_b32 v9, v9, v2")
            e(f"v_lshl_add_u32 v{(15,13)[q]}, v9, 4, v8")
            e(f"v_subrev_u32 v{(12,11)[q]}, s{S_T4}, v{V_DV+q}")
        e(f"s_mov_b32 s{S_T3}, 0")
        dV0 = self.dma_v_stage(0)
        dKT = [f"s_add_u32 m0, s{S_T4}, {LDS_KT}", "s_nop 0"] + [self.dma_k(q, soff=S_T3, srd=S_KT, v=(15, 13)[q]) for q in range(2)]
        dK1 = self.dma_k_stage(1)
        dVT = [f"s_add_u32 m0, s{S_T4}, {LDS_VT}", "s_nop 0"] + [self.dma_v(q, soff=S_T3, srd=S_VT, v=(12, 11)[q]) for q in range(2)]
        dV1 = self.dma_v_stage(1)
        e(f"s_lshl_b32 s{S_T2}, s{S_J}, 13")
        e(f"v_lshlrev_b32 v8, 8, v2")
        e(f"v_add_u32 v8, s{S_T2}, v8")
        for ks in range(4):
            e(f"v_add_u32 v10, {4*ks}, v1")
            e(f"v_xor_b32 v10, v10, v2")
            e(f"v_lshl_add_u32 v{V_KA+ks}, v10, 4, v8")
        e(f"v_lshrrev_b32 v9, 2, v2")
        e(f"v_lshl_add_u32 v10, v1, 2, v9")
        e(f"v_and_b32 v5, 7, v10")
        e(f"v_lshlrev_b32 v10, 8, v10")
        e(f"s_add_u32 s{S_T2}, s{S_T2}, {LDS_V}")
        e(f"v_add_u32 v10, s{S_T2}, v10")
        e(f"v_and_b32 v6, 3, v2")
        e(f"v_lshl_add_u32 v10, v6, 3, v10")
        for dt in range(8):
            e(f"v_xor_b32 v6, {dt}, v5")
            e(f"v_lshl_add_u32 v{V_VA+dt}, v6, 5, v10")
        for i in range(64):
            e(f"v_mov_b32 v{V_OA+i}, 0")
        for i in range(64):
            e(f"v_accvgpr_write_b32 a{A_OB+i}, 0")
        e(f"s_mov_b32 s{S_THR}, 0x40004000")
        for i in range(16):
            e(f"v_mov_b32 v{V_LA+i}, 0")
        for i in range(4):
            e(f"v_mov_b32 v{V_ONE+i}, 0x3f803f80")
        e(f"s_mov_b32 s{S_C}, {f32bits(SCALE):#x}")
        e(f"s_mov_b32 s{S_C+1}, {f32bits(SCALE):#x}")
        e(f"s_lshl_b32 s{S_T1}, s{S_I}, 16")
        e(f"s_add_u32 s{S_T1}, s{S_T1}, 49152")
        e(f"s_lshl_b32 s{S_T2}, s{S_J}, 13")
        e(f"s_add_u32 s{S_T2}, s{S_T2}, s{S_T1}")
        e(f"s_sub_u32 s{S_T2}, s{S_T2}, s{S_WB}")
        for q in range(4):
            e(f"v_add_u32 v{4+q}, s{S_T2}, v{V_DK+q}")
        e(f"s_lshl_b32 s{S_T2}, s{S_J}, 14")
        e(f"s_sub_u32 s{S_T2}, s{S_T1}, s{S_T2}")
        e(f"s_add_u32 s{S_T2}, s{S_T2}, 8192")
        for ks in range(4):
            e(f"v_add_u32 v{48+ks}, s{S_T1}, v{V_KA+ks}")
            e(f"v_add_u32 v{52+ks}, s{S_T2}, v{V_KA+ks}")
        e(f"s_lshl_b32 s{S_T2}, s{S_J}, 13")
        e(f"s_sub_u32 s{S_T1}, {LDS_KT}, s{S_T2}")
        e(f"s_sub_u32 s{S_T2}, {LDS_VT-LDS_V}, s{S_T2}")
        for ks in range(4):
            e(f"v_add_u32 v{ks}, s{S_T1}, v{V_KA+ks}")
        for dt in range(8):
            e(f"v_add_u32 v{VTA+dt}, s{S_T2}, v{V_VA+dt}")
        order = cfg.get("order", "mid")
        pend = [dV0, dKT, dK1, dVT, dV1]
        nv = 8
        nearly = {"late": 0, "mid1": 1, "mid2": 2, "mid": 3, "early": 5}[order]
        for lines in pend[:nearly]:
            self.emit_all(lines)
            nv += sum(1 for x in lines if x.startswith("buffer_load"))
        pend = pend[nearly:]
        self.stamp()
        for k in range(8):
            e(f"s_waitcnt vmcnt({nv + 7 - k})")
            if k == 0:
                self.stamp()
            if k % 2 == 1 and pend:
                lines = pend.pop(0)
                self.emit_all(lines)
                nv += sum(1 for x in lines if x.startswith("buffer_load"))
            for x in range(4):
                src = 128 + 4 * k + x
                t = 176 + 2 * x
                e(f"v_lshlrev_b32 v{t}, 16, v{src}")
                e(f"v_and_b32 v{t+1}, 0xffff0000, v{src}")
            for x in range(4):
                t = 176 + 2 * x
                e(f"v_pk_mul_f32 v[{t}:{t+1}], v[{t}:{t+1}], s[{S_C}:{S_C+1}]")
            o = 184 + 4 * (k % 2)
            for x in range(4):
                t = 176 + 2 * x
                e(f"v_cvt_pk_bf16_f32 v{o+x}, v{t}, v{t+1}")
            e(f"ds_write_b128 v{4+k%4}, v[{o}:{o+3}] offset:{(k>>2)*4096+(k&3)*1024}")
        for lines in pend:
            self.emit_all(lines)
        e(f"s_waitcnt vmcnt(16) lgkmcnt(0)")
        e("s_barrier")
        self.stamp()
        for ks in range(4):
            e(f"ds_read_b128 a[{A_QA+4*ks}:{A_QA+4*ks+3}], v{48+ks}")
            e(self.k_read(ks, 0))
        for ks in range(4):
            e(self.k_read(4 + ks, 0))
        for ks in range(4):
            e(f"ds_read_b128 a[{A_QA+16+4*ks}:{A_QA+16+4*ks+3}], v{48+ks} offset:4096")
        for qb in range(2):
            for ks in range(4):
                e(f"ds_read_b128 a[{A_QB+16*qb+4*ks}:{A_QB+16*qb+4*ks+3}], v{52+ks} offset:{qb*4096}")
        e(f"s_mov_b32 s{S_T0}, {f32bits(-1e9*1.4426950408889634):#x}")
        bias1 = []
        for g in range(4):
            for k in range(2):
                src = 16 + 2 * g + k
                d0 = V_ST + 4 * g + 2 * k
                bias1.append(f"v_lshlrev_b32 v{d0}, 16, v{src}")
                bias1.append(f"v_and_b32 v{d0+1}, 0xffff0000, v{src}")
        for i in range(16):
            bias1.append(f"v_sub_f32 v{V_ST+i}, 1.0, v{V_ST+i}")
        self.emit_all(bias1[:16])
        mf = self.qk_mfmas("A", cin="0") + self.qk_mfmas("B", cin="0")
        pre = {}
        for k in range(4):
            pre[k] = [f"s_waitcnt lgkmcnt({min(15, 24-2*(k+1))})"]
        for k in range(4):
            pre[4 + k] = [f"s_waitcnt lgkmcnt({min(15, 24-8-(k+1))})"]
        for k in range(4):
            pre[8 + k] = [f"s_waitcnt lgkmcnt({24-12-(k+1)})"]
        pre[16] = ["s_waitcnt lgkmcnt(4)"]
        pre[24] = ["s_waitcnt lgkmcnt(0)"]
        gaps = {}

        def put(g, s):
            gaps.setdefault(g, []).append(s)
        for g, s in spread(bias1[16:], 0, 7):
            put(g, s)
        for g, s in spread(self.dma_k_stage(2), 8, 17):
            put(g, s)
        tA = self.blk("A")["IT"]
        bias2 = [f"v_fma_f32 v{V_ST+i}, v{V_ST+i}, s{S_T0}, v{tA+6+i//8}" for i in range(16)]
        for g, s in spread(self.ism_part1("A") + bias2, 19, 31):
            put(g, s)
        self.emit_sched(mf, gaps, pre)
        e(f"s_waitcnt vmcnt(8)")
        e("s_barrier")
        self.stamp()
        for i in range(8):
            e(self.k_read(i, 0, dst=A_KT, addr=0, off=0))
        for dt in range(8):
            self.emit_all(self.v_reads(dt, 0))
        p2a = self.ism_part2("A")
        self.emit_all(p2a[:16])
        mf = self.qk_mfmas("A", kf=A_KT, cin="self", dst=V_ST) + self.pv_mfmas("A")
        pre = {0: ["s_waitcnt lgkmcnt(15)"], 16: ["s_waitcnt lgkmcnt(15)", "s_nop 1"]}
        gaps = {}
        rd = [self.k_read(i, 1, dst=A_KT) for i in range(8)]
        for g, s in spread(p2a[16:], 0, 15):
            put(g, s)
        dm = self.dma_v_stage(2) + self.dma_k_stage(3) + self.dma_k_stage(0) + self.dma_v_stage(3)
        npf = cfg["pf"]
        if npf:
            e(f"s_cmp_eq_u32 s{S_QH}, 0")
            e(f"s_cselect_b32 s{S_PF}, s{S_K}, s{S_V}")
            e(f"s_cselect_b32 s{S_PF+1}, s{S_K+1}, s{S_V+1}")
            e(f"s_mov_b32 s{S_PF+2}, 524288")
            e(f"s_mov_b32 s{S_PF+3}, 0x00020000")
            e(f"s_add_u32 s{S_PFO}, s{S_WB}, {5*16384}")
            e(f"v_mul_u32_u24 v{V_PF}, {cfg['pfstride']}, v{ln}")
            for k in range(npf):
                dm += [self.pf_load(), f"s_add_u32 s{S_PFO}, s{S_PFO}, 16384"]
        rdv = []
        for dt in range(8):
            rdv += self.v_reads(dt, 0, dst=A_VT, addr=VTA, off=0)
        for g, s in spread(self.ism_part1("B"), 16, 23):
            put(g, s)
        smt = self.sm_stream("A", src=V_ST)
        h0 = [s for g, s in smt if g < 17]
        h1 = [s for g, s in smt if g >= 17]
        h0n = []
        for k, s in enumerate(h0):
            h0n.append(s)
            if s.startswith("v_exp") and k + 1 < len(h0) and h0[k + 1].startswith("v_cvt"):
                h0n.append("s_nop 0")
        for g, s in spread(h0n, 24, 33):
            put(g, s)
        for k, s in enumerate(h1):
            put(34, s)
            if s.startswith("v_exp") and k + 1 < len(h1) and h1[k + 1].startswith("v_cvt"):
                put(34, "s_nop 0")
        for g, s in spread(rdv, 0, 15):
            put(g, s)
        for g, s in spread(rd, 16, 31):
            put(g, s)
        for g, s in spread(dm, 0, 33):
            put(g, s)
        self.emit_sched(mf, gaps, pre)
        e("s_waitcnt lgkmcnt(0)")
        self.stamp()
        carry = spread(self.ism_part2("B"), 0, 29)
        p1 = 1 if npf else 0
        carry = self.iteration(0, carry, vm=16 + npf, pva_vf=A_VT, first=True)
        carry = self.iteration(1, carry, vm=8 + npf + 8 + p1)
        carry = self.iteration(2, carry, vm=npf + 2 * (8 + p1))
        vms = 2 * (8 + p1) + p1
        t = carry
        m0 = 3
        while m0 < cfg.get("slowN", 0):
            for m in range(m0, m0 + 4):
                t = self.iteration(m, t, vm=vms)
            m0 += 4
        e(f"s_mov_b32 s{S_LOOP}, {(27 - m0) // 4}")
        self.label("L_loop")
        for m in range(m0, m0 + 4):
            le = None
            if m == m0 + 3:
                le = [f"s_sub_u32 s{S_LOOP}, s{S_LOOP}, 1", f"s_cmp_lg_u32 s{S_LOOP}, 0", "s_cbranch_scc1 L_loop"]
            t = self.iteration(m, t, loop_end=le, vm=vms)
        t = self.iteration(27, t, vm=vms)
        t = self.iteration(28, t, dma=False, vm=vms)
        self.stamp()
        t = self.iteration(29, t, dma=False, vm=(8 + p1) + p1)
        t = self.iteration(30, t, dma=False, vm=0, kread=False, bar=cfg["lastbar"])
        self.stamp()
        self.c("---- final PV")
        ds = [(g, s) for g, s in t if s.startswith("ds_")]
        sm = [(g, s) for g, s in t if not s.startswith("ds_")]
        self.emit_all([s for g, s in ds])
        e(f"v_lshlrev_b32 v32, 4, v{ln}")
        e(f"s_lshl_b32 s{S_T0}, s{S_W}, 14")
        e(f"s_xor_b32 s{S_T1}, s{S_T0}, 16384")
        e(f"v_add_u32 v33, s{S_T0}, v32")
        e(f"v_add_u32 v34, s{S_T1}, v32")
        e(f"s_lshl_b32 s{S_T0}, s{S_W}, 10")
        e(f"s_add_u32 s{S_T0}, s{S_T0}, {LDS_ML}")
        e(f"s_xor_b32 s{S_T1}, s{S_T0}, 1024")
        e(f"v_add_u32 v35, s{S_T0}, v32")
        e(f"v_add_u32 v36, s{S_T1}, v32")
        pa, pb = self.pv_mfmas("A", A_VT), self.pv_mfmas("B", A_VT)
        mf = pa[:9] + pb + pa[9:]
        gaps = {}
        sml = []
        for k, (g, s) in enumerate(sm):
            sml.append(s)
            if s.startswith("v_exp") and k + 1 < len(sm) and sm[k + 1][1].startswith("v_cvt"):
                sml.append("s_nop 0")
        for g, s in spread(sml, 0, 8):
            put(g, s)
        put(9, f"s_lshl_b32 s{S_T2}, s{S_W}, 14")
        put(9, f"s_add_u32 s{S_T2}, s{S_T2}, {LDS_V}")
        put(9, f"v_and_b32 v42, 15, v{ln}")
        put(10, f"v_lshrrev_b32 v43, 4, v{ln}")
        put(10, f"v_mul_u32_u24 v40, 272, v42")
        put(11, f"v_and_b32 v44, 1, v43")
        put(11, f"v_lshl_add_u32 v40, v44, 5, v40")
        put(12, f"v_lshrrev_b32 v44, 1, v43")
        put(31, f"v_lshl_add_u32 v40, v44, 4, v40")
        put(31, f"v_add_u32 v40, s{S_T2}, v40")
        put(32, f"v_mul_u32_u24 v41, 272, v43")
        put(32, f"v_lshl_add_u32 v41, v42, 4, v41")
        put(33, f"v_add_u32 v41, s{S_T2}, v41")
        put(20, f"v_mov_b32 v8, v{V_MB}")
        put(20, f"v_mov_b32 v9, v{V_MB+1}")
        put(21, f"v_mov_b32 v10, v{V_LB}")
        for r4 in range(16):
            mi = 9 + 9 * (r4 // 8) + r4 % 8
            put(mi + 4, f"ds_write_b128 v33, a[{A_OB+4*r4}:{A_OB+4*r4+3}] offset:{r4*1024}")
        put(30, f"v_mov_b32 v11, v{V_LB+4}")
        put(31, f"ds_write_b128 v35, v[8:11]")
        self.emit_sched(mf, gaps, pre={0: ["s_waitcnt lgkmcnt(0)"], 9: ["s_nop 1"]})
        e("s_waitcnt lgkmcnt(0)")
        e("s_barrier")
        self.stamp()
        e(f"ds_read_b128 v[8:11], v36")
        for r4 in range(16):
            e(f"ds_read_b128 v[{128+4*r4}:{128+4*r4+3}], v34 offset:{r4*1024}")
        e("s_waitcnt lgkmcnt(15)")
        for qb in range(2):
            e(f"v_max_f32 v{12+qb}, v{V_MA+qb}, v{8+qb}")
        for qb in range(2):
            e(f"v_sub_f32 v{24+qb}, v{V_MA+qb}, v{12+qb}")
            e(f"v_sub_f32 v{26+qb}, v{8+qb}, v{12+qb}")
        for qb in range(2):
            e(f"v_exp_f32 v{24+qb}, v{24+qb}")
            e(f"v_exp_f32 v{26+qb}, v{26+qb}")
        e("s_nop 0")
        for qb in range(2):
            e(f"v_mul_f32 v{28+qb}, v{V_LA+4*qb}, v{24+qb}")
        for qb in range(2):
            e(f"v_fma_f32 v{28+qb}, v{10+qb}, v{26+qb}, v{28+qb}")
        for qb in range(2):
            e(f"v_rcp_f32 v{28+qb}, v{28+qb}")
        e("s_nop 0")
        for qb in range(2):
            e(f"v_mul_f32 v{16+4*qb}, v{24+qb}, v{28+qb}")
            e(f"v_mul_f32 v{18+4*qb}, v{26+qb}, v{28+qb}")
        for qb in range(2):
            e(f"v_mov_b32 v{17+4*qb}, v{16+4*qb}")
            e(f"v_mov_b32 v{19+4*qb}, v{18+4*qb}")
        stf = cfg.get("stf", "")
        e(f"s_lshl_b32 s{S_T0}, s{S_W}, 13")
        e(f"s_add_u32 s{S_T1}, s{S_T0}, 4096")
        log = ["ml"] + [f"o{r}" for r in range(16)]
        def wait(tag):
            n = len(log) - 1 - log.index(tag)
            e(f"s_waitcnt lgkmcnt({min(15, n)})")
        for qb in range(2):
            fa, fb = 16 + 4 * qb, 18 + 4 * qb
            for dp in range(4):
                gi = 4 * qb + dp
                base = 32 * qb + 8 * dp
                r4 = base // 4
                wait(f"o{r4+1}")
                pk = 48 + 4 * (gi % 4)
                for k in range(0, 8, 2):
                    o = 128 + base + k
                    e(f"v_pk_mul_f32 v[{o}:{o+1}], v[{o}:{o+1}], v[{fb}:{fb+1}]")
                for k in range(0, 8, 2):
                    o = 128 + base + k
                    oa = V_OA + base + k
                    e(f"v_pk_fma_f32 v[{o}:{o+1}], v[{oa}:{oa+1}], v[{fa}:{fa+1}], v[{o}:{o+1}]")
                for k in range(4):
                    o = 128 + base + 2 * k
                    e(f"v_cvt_pk_bf16_f32 v{pk+k}, v{o}, v{o+1}")
                if qb == 1 and dp >= 2:
                    for k in (2 * (dp - 2), 2 * (dp - 2) + 1):
                        wait(f"r{k}")
                        e(f"buffer_store_dwordx4 v[{64+4*k}:{67+4*k}], v32, s[{S_O}:{S_O+3}], s{S_T0} offen offset:{k*1024}{stf}")
                else:
                    e("s_nop 1")
                e(f"v_permlane16_swap_b32 v{pk}, v{pk+2}")
                e(f"v_permlane16_swap_b32 v{pk+1}, v{pk+3}")
                e("s_nop 1")
                e(f"ds_write_b128 v40, v[{pk}:{pk+3}] offset:{qb*16*272+dp*64}")
                log.append(f"w{gi}")
                if qb == 1 and dp == 0:
                    for k in range(4):
                        e(f"ds_read_b128 v[{64+4*k}:{67+4*k}], v41 offset:{k*4*272}")
                        log.append(f"r{k}")
        for k in range(4, 8):
            e(f"ds_read_b128 v[{64+4*k}:{67+4*k}], v41 offset:{k*4*272}")
            log.append(f"r{k}")
        for k in range(4, 8):
            wait(f"r{k}")
            e(f"buffer_store_dwordx4 v[{64+4*k}:{67+4*k}], v32, s[{S_O}:{S_O+3}], s{S_T1} offen offset:{(k%4)*1024}{stf}")
        if self.stamps:
            self.stamp()
            e("s_waitcnt vmcnt(0)")
            self.stamp()
            e("s_memrealtime s[100:101]")
            e("s_waitcnt lgkmcnt(0)")
            if 'dbgst' in self.exp:
                e("s_cmp_lg_u32 s2, 100")
                e("s_cbranch_scc1 L_done")
                e(f"s_cmp_lg_u32 s{S_W}, 0")
                e("s_cbranch_scc1 L_done")
                e("s_mov_b32 s8, s18"); e("s_mov_b32 s9, s19"); e("s_mov_b32 s10, 256"); e("s_mov_b32 s11, 0x00020000")
                e("v_mov_b32 v4, 0")
                e(f"v_cmp_eq_u32 vcc, 0, v{ln}")
                e("s_and_saveexec_b64 s[12:13], vcc")
                for k in range(1, self.nstamp):
                    e(f"s_sub_u32 s3, s{72+2*k}, s72")
                    e("v_mov_b32 v6, s3")
                    e(f"buffer_store_dword v6, v4, s[8:11], 0 offen offset:{4*k}")
                e("s_sub_u32 s3, s100, s98")
                e("v_mov_b32 v6, s3")
                e(f"buffer_store_dword v6, v4, s[8:11], 0 offen offset:0")
            else:
                e("s_mov_b32 s8, s18"); e("s_mov_b32 s9, s19"); e("s_mov_b32 s10, 0x1000000"); e("s_mov_b32 s11, 0x00020000")
                e("s_lshl_b32 s3, s2, 2")
                e(f"s_add_u32 s3, s3, s{S_W}")
                e("s_lshl_b32 s3, s3, 7")
                e("v_mov_b32 v4, s3")
                e(f"v_cmp_eq_u32 vcc, 0, v{ln}")
                e("s_and_saveexec_b64 s[12:13], vcc")
                for k in range(self.nstamp):
                    e(f"s_sub_u32 s3, s{72+2*k}, s72")
                    e("v_mov_b32 v6, s3")
                    e(f"buffer_store_dword v6, v4, s[8:11], 0 offen offset:{4*k}")
                e("v_mov_b32 v6, s100")
                e(f"buffer_store_dword v6, v4, s[8:11], 0 offen offset:{4*16}")
                e("v_mov_b32 v6, s98")
                e(f"buffer_store_dword v6, v4, s[8:11], 0 offen offset:{4*17}")
        self.label("L_done")
        e("s_endpgm")
        for u, X, src in self.stubs:
            self.label(f"L_stub{u}")
            if src is not None:
                S = self.blk(X)["S"]
                for i in range(16):
                    e(f"v_mov_b32 v{S+i}, v{src+i}")
            e(f"s_call_b64 s[{S_RET}:{S_RET+1}], L_slow{X}")
            e(f"s_branch L_back{u}")
        self.slow_path("A")
        self.slow_path("B")
        self.label("L_codeend")
        L.append('.section .rodata,"a"')
        L.append(".p2align 6")
        L.append(f".amdhsa_kernel {KNAME}")
        L.append("  .amdhsa_next_free_vgpr 512")
        L.append("  .amdhsa_next_free_sgpr 102")
        L.append("  .amdhsa_accum_offset 256")
        L.append("  .amdhsa_group_segment_fixed_size 0")
        L.append("  .amdhsa_kernarg_size 72")
        L.append("  .amdhsa_user_sgpr_count 2")
        L.append("  .amdhsa_user_sgpr_kernarg_segment_ptr 1")
        L.append("  .amdhsa_system_sgpr_workgroup_id_x 1")
        L.append(".end_amdhsa_kernel")
        return "\n".join(L) + "\n"


if __name__ == "__main__":
    ap = argparse.ArgumentParser()
    ap.add_argument("-o", default="k10.s")
    ap.add_argument("--no-nt", action="store_true")
    ap.add_argument("--stamps", action="store_true")
    ap.add_argument("--no-pf", action="store_true")
    ap.add_argument("--exp", default="")
    ap.add_argument("--cfg", default="")
    a = ap.parse_args()
    cfg = eval("dict(" + a.cfg + ")") if a.cfg else None
    g = Gen(nt=not a.no_nt, stamps=a.stamps, code_pf=not a.no_pf, exp=a.exp, cfg=cfg)
    open(a.o, "w").write(g.build())
```

```python
import sys, struct, argparse

KNAME = "standalone__tree_speculative_verify_tree_attention_over_candidate_token_tree__sampling_kernel"
HEADER = open("standalone__tree_speculative_verify_tree_attention_over_candidate_token_tree__sampling.s.ref").read().split("; Override launch")[0]


DOC = """
Tree attention (GQA, 2048 cached keys + 32 masked tree keys), generated by work/gen6.py.
One workgroup per (batch, kv head, half of the 8 query heads): 128 query rows; 4 waves, one per SIMD, 512 registers.
Wave w = 2i+j owns query heads w (block A) and w^1 (block B) and key half j of every 64-key stage.
K/V stages stream HBM -> LDS by LDS-DMA (4-slot ring, XOR-swizzled); S^T = K Q^T and O^T = V^T P^T with 16x16x32
bf16 MFMAs, so P^T feeds the second MFMA straight from registers (V read with the transposing LDS read).
Online softmax: Q is pre-scaled by log2(e)/sqrt(D); the running reference (true running max + 10) enters as the
MFMA C operand; whenever any probability of a tile reaches 2.0 the out-of-line path recomputes the true max,
rescales O and l and redoes the tile.  Row sums come from an extra MFMA with an all-ones A operand.
The two key halves are merged through LDS at the end; outputs leave as full 1 KiB rows-of-rows stores.
"""


def f32bits(x):
    return struct.unpack("<I", struct.pack("<f", x))[0]


V_OA = 64
V_SA, V_SB = 128, 144
V_CA, V_CB = 160, 168
V_PA, V_PB = 176, 184
V_EA, V_EB = 192, 196
V_LA, V_LB = 200, 208
V_MA, V_MB = 216, 218
V_XA, V_XB = 220, 221
V_LANE = 222
V_KA = 224
V_VA = 228
V_DK = 236
V_DV = 240
V_ONE = 244
V_SL = 0
V_ST = 32
V_IT = 48
VTA = 248
A_OB = 0
A_QA, A_QB = 64, 96
A_KF = 128
A_VF = 160
A_VT = 192
A_KT = 224
S_K, S_V, S_Q, S_KT, S_VT, S_M, S_O = 20, 24, 28, 32, 36, 40, 44
S_W, S_I, S_J = 48, 49, 50
S_KOFF, S_VOFF = 51, 52
S_WB = 53
S_LOOP = 54
S_THR = 55
S_T4 = 59
S_PFO = 56
S_PF = 28
V_PF = 242
V_PFD = 243
S_RET = 60
S_T0, S_T1, S_T2, S_T3 = 62, 63, 64, 65
S_BH, S_QH = 66, 67
S_C = 68
S_PC = 70

LDS_V = 65536
LDS_KT = 131072
LDS_VT = 139264
LDS_ML = 147456
BIAS = 10.0
SCALE = (128 ** -0.5) * 1.4426950408889634
NG = 68
G_PVA, G_QKB, G_PVB = 16, 34, 50


def spread(ops, g0, g1):
    n = len(ops)
    k = g1 - g0 + 1
    return [(g0 + (i * k) // n, op) for i, op in enumerate(ops)]


class Gen:
    def __init__(self, nt=True, code_pf=True, stamps=False, exp="", cfg=None):
        self.L = []
        self.nt = " nt" if nt else ""
        self.code_pf = code_pf
        self.uid = 0
        self.stubs = []
        self.stamps = stamps
        self.nstamp = 0
        self.exp = exp
        self.cfg = dict(sma=22, smb=56, bar=5, stf=" nt",
                        kread=[7, 9, 11, 15, 17, 19, 21, 23],
                        vread=[29, 33, 35, 37, 41, 43, 45, 49, 51, 53, 55, 57, 59, 61, 61, 63],
                        dma=[13, 20, 27, 31, 39, 47, 54, 65], lastbar=27, pf=0, pfgap=67, pfstride=64, pfpol=" nt")
        if cfg:
            self.cfg.update(cfg)

    def e(self, s):
        self.L.append("  " + s)

    def label(self, s):
        self.L.append(s + ":")

    def c(self, s):
        self.L.append("  ; " + s)

    def stamp(self):
        if self.stamps:
            k = self.nstamp
            self.nstamp += 1
            assert k < 13
            self.e(f"s_memtime s[{72+2*k}:{73+2*k}]")

    def blk(self, X):
        if X == "A":
            return dict(S=V_SA, C=V_CA, P=V_PA, E=V_EA, L=V_LA, M=V_MA, Q=A_QA, IT=V_IT, X=V_XA)
        return dict(S=V_SB, C=V_CB, P=V_PB, E=V_EB, L=V_LB, M=V_MB, Q=A_QB, IT=V_IT + 8, X=V_XB)

    def qk_mfmas(self, X, kf=A_KF, cin=None, dst=None):
        r = self.blk(X)
        S = r["S"] if dst is None else dst
        Q = r["Q"]
        out = []
        for qb in range(2):
            for kt in range(2):
                s = S + 8 * qb + 4 * kt
                for ks in range(4):
                    if ks == 0 and cin != "self":
                        c = f"v[{r['C']+4*qb}:{r['C']+4*qb+3}]" if cin is None else cin
                    else:
                        c = f"v[{s}:{s+3}]"
                    k = kf + 4 * (4 * kt + ks)
                    q = Q + 4 * (4 * qb + ks)
                    out.append(f"v_mfma_f32_16x16x32_bf16 v[{s}:{s+3}], a[{k}:{k+3}], a[{q}:{q+3}], {c}")
        return out

    def pv_mfmas(self, X, vf=A_VF):
        r = self.blk(X)
        P, Lr = r["P"], r["L"]
        out = []
        for qb in range(2):
            grp = []
            for dt in range(8):
                f = vf + 4 * dt
                ob = 32 * qb + 4 * dt
                if X == "A":
                    o = f"v[{V_OA+ob}:{V_OA+ob+3}]"
                else:
                    o = f"a[{A_OB+ob}:{A_OB+ob+3}]"
                grp.append(f"v_mfma_f32_16x16x32_bf16 {o}, a[{f}:{f+3}], v[{P+4*qb}:{P+4*qb+3}], {o}")
            l = f"v[{Lr+4*qb}:{Lr+4*qb+3}]"
            grp.append(f"v_mfma_f32_16x16x32_bf16 {l}, v[{V_ONE}:{V_ONE+3}], v[{P+4*qb}:{P+4*qb+3}], {l}")
            out += grp
        return out

    def sm_stream(self, X, src=None):
        r = self.blk(X)
        S, P, E, XX = r["S"], r["P"], r["E"], r["X"]
        if src is not None:
            S = src
        out = []
        for e in range(16):
            out.append((2 * e, f"v_exp_f32 v{E+e%4}, v{S+e}"))
            if e % 2 == 1:
                k = e // 2
                out.append((2 * e + 1, f"v_cvt_pk_bf16_f32 v{P+k}, v{E+(e-1)%4}, v{E+e%4}"))
                if k == 3:
                    out.append((2 * e - 1, f"v_or3_b32 v{XX}, v{P}, v{P+1}, v{P+2}"))
                if k == 5:
                    out.append((2 * e - 1, f"v_or3_b32 v{XX}, v{XX}, v{P+3}, v{P+4}"))
                if k == 7:
                    out.append((2 * e - 1, f"v_or3_b32 v{XX}, v{XX}, v{P+5}, v{P+6}"))
        out.append((33, f"v_bitop3_b32 v{XX}, v{XX}, v{P+7}, s{S_THR} bitop3:0xa8"))
        out.append((35, f"v_cmp_ne_u32 vcc, 0, v{XX}"))
        self.uid += 1
        u = self.uid
        self.stubs.append((u, X, src))
        out.append((37, f"s_cbranch_vccnz L_stub{u}\nL_back{u}:"))
        out.sort(key=lambda x: x[0])
        return out

    def rowmax(self, S, t, dst, floor0=False):
        ops = [
            f"v_max3_f32 v{t}, v{S}, v{S+1}, v{S+2}",
            f"v_max3_f32 v{t+1}, v{S+3}, v{S+4}, v{S+5}",
            f"v_max3_f32 v{t}, v{t}, v{S+6}, v{S+7}",
            f"v_max_f32 v{t}, v{t}, v{t+1}",
            f"v_mov_b32 v{t+1}, v{t}",
            "s_nop 1",
            f"v_permlane16_swap_b32 v{t}, v{t+1}",
            "s_nop 1",
            f"v_max_f32 v{t}, v{t}, v{t+1}",
            f"v_mov_b32 v{t+1}, v{t}",
            "s_nop 1",
            f"v_permlane32_swap_b32 v{t}, v{t+1}",
            "s_nop 1",
        ]
        ops.append(f"v_max_f32 v{t}, v{t}, v{t+1}")
        ops.append(f"v_add_f32 v{dst}, {f32bits(BIAS):#x}, v{t}")
        if floor0:
            ops.append(f"v_max_f32 v{dst}, 0, v{dst}")
        return ops

    def ism_part1(self, X):
        r = self.blk(X)
        S, M, t = r["S"], r["M"], r["IT"]
        a = self.rowmax(S, t, M)
        b = self.rowmax(S + 8, t + 3, M + 1)
        ops = []
        for x, y in zip(a, b):
            if x.startswith("s_nop"):
                ops.append("s_nop 0")
            else:
                ops += [x, y]
        ops.append(f"v_sub_f32 v{t+6}, 0, v{M}")
        ops.append(f"v_sub_f32 v{t+7}, 0, v{M+1}")
        return ops

    def ism_part2(self, X):
        r = self.blk(X)
        S, C, P, E, M, t = r["S"], r["C"], r["P"], r["E"], r["M"], r["IT"]
        ops = []
        for i in range(16):
            ops.append(f"v_sub_f32 v{S+i}, v{S+i}, v{M+i//8}")
        ex = []
        for e in range(17):
            if e < 16:
                ex.append(f"v_exp_f32 v{E+e%4}, v{S+e}")
            if e < 8:
                ex.append(f"v_mov_b32 v{C+e}, v{t+6+e//4}")
            elif e == 16:
                ex.append("s_nop 0")
            p = e - 1
            if p >= 0 and p % 2 == 1:
                ex.append(f"v_cvt_pk_bf16_f32 v{P+p//2}, v{E+(p-1)%4}, v{E+p%4}")
        return ops + ex

    def emit_line(self, s):
        if "\n" in s:
            for x in s.split("\n"):
                self.emit_line(x)
            return
        if s.endswith(":"):
            self.label(s[:-1])
        else:
            self.e(s)

    def k_read(self, idx, slot, dst=A_KF, addr=V_KA, off=None):
        kt, ks = idx // 4, idx % 4
        o = (slot * 16384 if off is None else off) + kt * 4096
        return f"ds_read_b128 a[{dst+4*idx}:{dst+4*idx+3}], v{addr+ks} offset:{o}"

    def v_reads(self, dt, slot, dst=A_VF, addr=V_VA, off=None):
        o = slot * 16384 if off is None else off
        f = dst + 4 * dt
        return [f"ds_read_b64_tr_b16 a[{f}:{f+1}], v{addr+dt} offset:{o}",
                f"ds_read_b64_tr_b16 a[{f+2}:{f+3}], v{addr+dt} offset:{o+4096}"]

    def dma_k(self, q, soff=S_KOFF, srd=S_K, v=None):
        vv = V_DK + q if v is None else v
        return f"buffer_load_dwordx4 v{vv}, s[{srd}:{srd+3}], s{soff} offen offset:{q*1024}{self.nt} lds"

    def dma_v(self, q, soff=S_VOFF, srd=S_V, v=None):
        vv = V_DV + (q & 1) if v is None else v
        return f"buffer_load_dwordx4 v{vv}, s[{srd}:{srd+3}], s{soff} offen offset:{q*1024}{self.nt} lds"

    def pf_load(self):
        return f"buffer_load_dword v{V_PFD}, v{V_PF}, s[{S_PF}:{S_PF+3}], s{S_PFO} offen{self.cfg['pfpol']}"

    def dma_k_stage(self, slot):
        return ([f"s_add_u32 m0, s{S_WB}, {slot*16384}", "s_nop 0 ;m0"] + [self.dma_k(q) for q in range(4)]
                + [f"s_add_u32 s{S_KOFF}, s{S_KOFF}, 16384"])

    def dma_v_stage(self, slot):
        return ([f"s_add_u32 m0, s{S_WB}, {LDS_V+slot*16384}", "s_nop 0 ;m0"] + [self.dma_v(q) for q in range(4)]
                + [f"s_add_u32 s{S_VOFF}, s{S_VOFF}, 16384"])

    def emit_all(self, lines):
        for s in lines:
            self.emit_line(s)

    def emit_sched(self, mfmas, gaps, pre=None, part=False):
        pre = pre or {}
        n = len(mfmas)
        if part and self.cfg.get("propart", 0):
            isv = lambda x: x.startswith("v_") or (x.startswith("s_nop") and ";m0" not in x) or x.startswith("s_cbranch")
            for k in list(gaps):
                if k < n:
                    gaps[k] = [x for x in gaps[k] if not isv(x)] + [x for x in gaps[k] if isv(x)]
        for k in range(n):
            for s in pre.get(k, []):
                self.emit_line(s)
            self.e(mfmas[k])
            for s in gaps.get(k, []):
                self.emit_line(s)
        for k in sorted(g for g in gaps if g >= n):
            for s in gaps[k]:
                self.emit_line(s)

    def iteration(self, m, carry, dma=True, vm=16, pva_vf=None, kread=True, loop_end=None, bar=None, first=False):
        cfg = self.cfg
        mm = m % 4
        KB, VB = (A_KF, A_KT), (A_VF, A_VT)
        self.c(f"---- iteration {m} (mod 4 = {mm})")
        items = []

        def put(g, s, pri=None):
            if 'novalu' in self.exp and s.startswith('v_'):
                return
            if 'nods' in self.exp and s.startswith('ds_'):
                return
            if pri is None:
                if s.startswith("v_") or s.startswith("s_nop"):
                    pri = 6
                elif s.startswith("ds_") and m < cfg.get("slowN", 0) and cfg.get("slowvf", 1):
                    pri = 6.5
                elif s.startswith("ds_") or s.startswith("buffer_"):
                    pri = 3
                else:
                    pri = 2
            items.append((g, pri, len(items), s))

        kf, vf = KB[(m + 1) % 2], VB[m % 2]
        mf = (self.qk_mfmas("A", kf) + self.pv_mfmas("A", vf if pva_vf is None else pva_vf)
              + self.qk_mfmas("B", kf) + self.pv_mfmas("B", vf))
        assert len(mf) == NG
        for g, s in carry:
            put(g, s)
        for g, s in self.sm_stream("A"):
            put(cfg["sma"] + g, s)
        for g, s in self.sm_stream("B"):
            put(cfg["smb"] + g, s)
        bg = cfg["bar"] if bar is None else bar
        if dma and 'nodma' not in self.exp:
            dm_ = cfg["dma"] if (m >= cfg.get("slowN", 0) or not cfg.get("slowdma", 1)) else [7, 9, 11, 13, 15, 17, 19, 20]
            gk, gv = dm_[:4], dm_[4:]
            assert gk[0] - 1 > bg and gv[0] - 1 >= gk[3] and gv[3] + 1 < NG
            put(gk[0] - 1, f"s_add_u32 m0, s{S_WB}, {((mm+1)%4)*16384}")
            for q, g in enumerate(gk):
                put(g, self.dma_k(q))
            put(gv[0] - 1, f"s_add_u32 m0, s{S_WB}, {LDS_V+mm*16384}", 4 if gv[0] - 1 == gk[3] else None)
            put(gk[3] + 1, f"s_add_u32 s{S_KOFF}, s{S_KOFF}, 16384")
            for q, g in enumerate(gv):
                put(g, self.dma_v(q))
            put(gv[3] + 1, f"s_add_u32 s{S_VOFF}, s{S_VOFF}, 16384")
            if cfg["pf"]:
                assert cfg["pfgap"] > gv[3]
                put(cfg["pfgap"], self.pf_load())
                put(cfg["pfgap"], f"s_add_u32 s{S_PFO}, s{S_PFO}, 16384", 4)
        put(bg, f"s_waitcnt vmcnt({vm}) lgkmcnt(0)", 0)
        if 'nobar' not in self.exp:
            put(bg, "s_barrier", 1)
        if kread:
            for i in range(8):
                assert bg < cfg["kread"][i] < NG
                sh_ = 1 if (m < cfg.get("slow2N", 0) and cfg["kread"][i] % 2 == 1) else 0
                put(cfg["kread"][i] + sh_, self.k_read(i, (mm + 2) % 4, dst=KB[m % 2]))
        vr = []
        for dt in range(8):
            vr += self.v_reads(dt, (mm + 1) % 4, dst=VB[(m + 1) % 2])
        for k, s in enumerate(vr):
            g = cfg["vread"][k]
            assert bg < g < NG and g >= 26 + k // 2
            if m < cfg.get("slow2N", 0) and g % 2 == 1:
                g += 1
            put(g, s)
        if loop_end:
            put(NG - 3, loop_end[0])
            put(NG - 1, loop_end[1], 5)
            put(NG - 1, loop_end[2], 9)
        items.sort()
        gaps = {}
        nxt = []
        for g, pri, _, s in items:
            if g >= NG:
                nxt.append((g - NG, s))
            else:
                gaps.setdefault(g, []).append(s)
        pre = {}
        if not first:
            assert max(cfg["kread"]) < min(cfg["vread"])
            pre[0] = ["s_waitcnt lgkmcnt(15)"]
            if bg >= 16:
                pre[16] = ["s_waitcnt lgkmcnt(0)"]
        self.emit_sched(mf, gaps, pre)
        return nxt

    def slow_path(self, X):
        r = self.blk(X)
        S, C, P, Lr, M = r["S"], r["C"], r["P"], r["L"], r["M"]
        t = V_SL
        self.label(f"L_slow{X}")
        e = self.e
        for qb in range(2):
            d = t + 3
            f = t + 4
            self.emit_all(self.rowmax(S + 8 * qb, t, d, floor0=True))
            e(f"v_add_f32 v{M+qb}, v{M+qb}, v{d}")
            e(f"v_exp_f32 v{f}, -v{d}")
            e(f"v_sub_f32 v{t+5}, 0, v{M+qb}")
            for i in range(4):
                e(f"v_mov_b32 v{C+4*qb+i}, v{t+5}")
            e(f"v_mul_f32 v{Lr+4*qb}, v{Lr+4*qb}, v{f}")
            if X == "A":
                for i in range(32):
                    o = V_OA + 32 * qb + i
                    e(f"v_mul_f32 v{o}, v{o}, v{f}")
            else:
                for i in range(0, 32, 4):
                    for k in range(4):
                        e(f"v_accvgpr_read_b32 v{t+8+k}, a{A_OB+32*qb+i+k}")
                    for k in range(4):
                        e(f"v_mul_f32 v{t+8+k}, v{t+8+k}, v{f}")
                    for k in range(4):
                        e(f"v_accvgpr_write_b32 a{A_OB+32*qb+i+k}, v{t+8+k}")
            for i in range(0, 8, 4):
                for k in range(4):
                    e(f"v_sub_f32 v{t+8+k}, v{S+8*qb+i+k}, v{d}")
                for k in range(4):
                    e(f"v_exp_f32 v{t+8+k}, v{t+8+k}")
                e("s_nop 0")
                e(f"v_cvt_pk_bf16_f32 v{P+4*qb+i//2}, v{t+8}, v{t+9}")
                e(f"v_cvt_pk_bf16_f32 v{P+4*qb+i//2+1}, v{t+10}, v{t+11}")
        e("s_nop 1")
        e(f"s_setpc_b64 s[{S_RET}:{S_RET+1}]")

    def srd(self, d, lo, hi, off, size):
        e = self.e
        e(f"s_add_u32 s{d}, s{lo}, s{off}")
        e(f"s_addc_u32 s{d+1}, s{hi}, 0")
        e(f"s_mov_b32 s{d+2}, {size}")
        e(f"s_mov_b32 s{d+3}, 0x00020000")

    def build(self):
        e = self.e
        L = self.L
        cfg = self.cfg
        L.append(HEADER.rstrip())
        L.append("; @launch grid=(256,1,1) block=(256,1,1) lds=163840")
        for x in DOC.strip("\n").split("\n"):
            L.append("; " + x)
        L.append('.amdgcn_target "amdgcn-amd-amdhsa--gfx950"')
        L.append(".text")
        L.append(f".globl {KNAME}")
        L.append(".p2align 8")
        L.append(f".type {KNAME},@function")
        self.label(KNAME)
        self.stamp()
        if self.stamps:
            e("s_memrealtime s[98:99]")
        e("s_cmp_ge_u32 s2, 256")
        e("s_cbranch_scc1 L_done")
        e("s_load_dwordx8 s[4:11], s[0:1], 0")
        e("s_load_dwordx4 s[12:15], s[0:1], 32")
        e("s_load_dwordx2 s[16:17], s[0:1], 48")
        if self.stamps:
            e(f"s_load_dwordx2 s[18:19], s[0:1], {56 if 'dbgst' in self.exp else 64}")
        e(f"s_getpc_b64 s[{S_PC}:{S_PC+1}]")
        self.label("L_pcbase")
        e(f"v_lshrrev_b32 v1, 6, v0")
        e(f"v_and_b32 v{V_LANE}, 63, v0")
        ln = V_LANE
        if self.code_pf:
            e(f"v_lshlrev_b32 v13, 4, v0")
            e("s_cmp_ge_u32 s2, 32")
            e("s_cbranch_scc1 L_nopf")
            e("s_mov_b32 s3, L_codeend-L_pcbase-16")
            for k in range(cfg.get('npfc', 6)):
                e(f"v_min_u32 v12, s3, v13")
                e(f"global_load_dwordx4 v[24:27], v12, s[{S_PC}:{S_PC+1}]")
                e(f"v_add_u32 v13, 0x1000, v13")
            self.label("L_nopf")
        for _ in range(cfg.get("shift", 0)):
            e("s_nop 0")
        e("s_and_b32 s3, s2, 7")
        e(f"v_readfirstlane_b32 s{S_W}, v1")
        e(f"s_lshr_b32 s{S_BH}, s2, 4")
        e(f"s_lshl_b32 s{S_BH}, s{S_BH}, 3")
        e(f"s_add_u32 s{S_BH}, s{S_BH}, s3")
        if 'samebh' in self.exp:
            e(f"s_and_b32 s{S_BH}, s{S_BH}, 7")
        e(f"s_lshr_b32 s{S_QH}, s2, 3")
        e(f"s_and_b32 s{S_QH}, s{S_QH}, 1")
        e(f"s_lshr_b32 s{S_I}, s{S_W}, 1")
        e(f"s_and_b32 s{S_J}, s{S_W}, 1")
        e(f"s_lshl_b32 s{S_WB}, s{S_W}, 12")
        e(f"v_lshrrev_b32 v1, 4, v{ln}")
        e(f"v_and_b32 v2, 15, v{ln}")
        e(f"v_lshlrev_b32 v3, 8, v1")
        e(f"v_add_u32 v3, s{S_WB}, v3")
        for q in range(4):
            e(f"v_add_u32 v4, {4*q}, v1")
            e(f"v_xor_b32 v4, v4, v2")
            e(f"v_lshl_add_u32 v{V_DK+q}, v4, 4, v3")
        for q in range(2):
            e(f"v_add_u32 v4, {4*q}, v1")
            e(f"v_lshlrev_b32 v4, 1, v4")
            e(f"v_xor_b32 v4, v4, v2")
            e(f"v_lshl_add_u32 v{V_DV+q}, v4, 4, v3")
        e(f"v_lshlrev_b32 v7, 6, v2")
        e(f"v_lshl_add_u32 v7, v1, 3, v7")
        e(f"v_lshlrev_b32 v14, 4, v{ln}")
        e(f"s_lshl_b32 s{S_T0}, s{S_BH}, 16")
        e(f"s_lshl_b32 s{S_T1}, s{S_QH}, 15")
        e(f"s_add_u32 s{S_T0}, s{S_T0}, s{S_T1}")
        e(f"s_lshl_b32 s{S_T1}, s{S_BH}, 19")
        e(f"s_lshr_b32 s{S_T2}, s{S_BH}, 2")
        e(f"s_lshl_b32 s{S_T2}, s{S_T2}, 11")
        e(f"s_lshl_b32 s{S_T3}, s{S_W}, 13")
        e(f"s_mov_b32 s{S_KOFF}, 0")
        e(f"s_mov_b32 s{S_VOFF}, 0")
        e("s_waitcnt lgkmcnt(0)")
        self.stamp()
        self.srd(S_Q, 4, 5, S_T0, 32768)
        for k in range(4):
            e(f"buffer_load_dwordx4 v[{128+4*k}:{131+4*k}], v14, s[{S_Q}:{S_Q+3}], s{S_T3} offen offset:{k*1024}{self.nt}")
        e(f"s_add_u32 s{S_T3}, s{S_T3}, 4096")
        self.srd(S_K, 6, 7, S_T1, 524288)
        for k in range(4):
            e(f"buffer_load_dwordx4 v[{144+4*k}:{147+4*k}], v14, s[{S_Q}:{S_Q+3}], s{S_T3} offen offset:{k*1024}{self.nt}")
        self.emit_all(self.dma_k_stage(0))
        self.srd(S_M, 14, 15, S_T2, 2048)
        for qb in range(2):
            for kt in range(2):
                g = 2 * qb + kt
                e(f"buffer_load_dwordx2 v[{16+2*g}:{17+2*g}], v7, s[{S_M}:{S_M+3}], 0 offen offset:{qb*1024+kt*32}")
        self.srd(S_V, 8, 9, S_T1, 524288)
        e(f"s_lshl_b32 s{S_T1}, s{S_BH}, 13")
        self.srd(S_KT, 10, 11, S_T1, 8192)
        self.srd(S_VT, 12, 13, S_T1, 8192)
        self.srd(S_O, 16, 17, S_T0, 32768)
        e(f"s_lshl_b32 s{S_T4}, s{S_W}, 11")
        e(f"s_lshl_b32 s{S_T2}, s{S_J}, 3")
        e(f"v_lshlrev_b32 v8, 8, v1")
        e(f"v_add_u32 v8, s{S_T4}, v8")
        for q in range(2):
            e(f"v_add_u32 v9, s{S_T2}, v1")
            e(f"v_add_u32 v9, {4*q}, v9")
            e(f"v_xor_b32 v9, v9, v2")
            e(f"v_lshl_add_u32 v{(15,13)[q]}, v9, 4, v8")
            e(f"v_subrev_u32 v{(12,11)[q]}, s{S_T4}, v{V_DV+q}")
        e(f"s_mov_b32 s{S_T3}, 0")
        dV0 = self.dma_v_stage(0)
        dKT = [f"s_add_u32 m0, s{S_T4}, {LDS_KT}", "s_nop 0"] + [self.dma_k(q, soff=S_T3, srd=S_KT, v=(15, 13)[q]) for q in range(2)]
        dK1 = self.dma_k_stage(1)
        dVT = [f"s_add_u32 m0, s{S_T4}, {LDS_VT}", "s_nop 0"] + [self.dma_v(q, soff=S_T3, srd=S_VT, v=(12, 11)[q]) for q in range(2)]
        dV1 = self.dma_v_stage(1)
        e(f"s_lshl_b32 s{S_T2}, s{S_J}, 13")
        e(f"v_lshlrev_b32 v8, 8, v2")
        e(f"v_add_u32 v8, s{S_T2}, v8")
        for ks in range(4):
            e(f"v_add_u32 v10, {4*ks}, v1")
            e(f"v_xor_b32 v10, v10, v2")
            e(f"v_lshl_add_u32 v{V_KA+ks}, v10, 4, v8")
        e(f"v_lshrrev_b32 v9, 2, v2")
        e(f"v_lshl_add_u32 v10, v1, 2, v9")
        e(f"v_and_b32 v5, 7, v10")
        e(f"v_lshlrev_b32 v10, 8, v10")
        e(f"s_add_u32 s{S_T2}, s{S_T2}, {LDS_V}")
        e(f"v_add_u32 v10, s{S_T2}, v10")
        e(f"v_and_b32 v6, 3, v2")
        e(f"v_lshl_add_u32 v10, v6, 3, v10")
        for dt in range(8):
            e(f"v_xor_b32 v6, {dt}, v5")
            e(f"v_lshl_add_u32 v{V_VA+dt}, v6, 5, v10")
        for i in range(64):
            e(f"v_mov_b32 v{V_OA+i}, 0")
        for i in range(64):
            e(f"v_accvgpr_write_b32 a{A_OB+i}, 0")
        e(f"s_mov_b32 s{S_THR}, 0x40004000")
        for i in range(16):
            e(f"v_mov_b32 v{V_LA+i}, 0")
        for i in range(4):
            e(f"v_mov_b32 v{V_ONE+i}, 0x3f803f80")
        e(f"s_mov_b32 s{S_C}, {f32bits(SCALE):#x}")
        e(f"s_mov_b32 s{S_C+1}, {f32bits(SCALE):#x}")
        e(f"s_lshl_b32 s{S_T1}, s{S_I}, 16")
        e(f"s_add_u32 s{S_T1}, s{S_T1}, 49152")
        e(f"s_lshl_b32 s{S_T2}, s{S_J}, 13")
        e(f"s_add_u32 s{S_T2}, s{S_T2}, s{S_T1}")
        e(f"s_sub_u32 s{S_T2}, s{S_T2}, s{S_WB}")
        for q in range(4):
            e(f"v_add_u32 v{4+q}, s{S_T2}, v{V_DK+q}")
        e(f"s_lshl_b32 s{S_T2}, s{S_J}, 14")
        e(f"s_sub_u32 s{S_T2}, s{S_T1}, s{S_T2}")
        e(f"s_add_u32 s{S_T2}, s{S_T2}, 8192")
        for ks in range(4):
            e(f"v_add_u32 v{48+ks}, s{S_T1}, v{V_KA+ks}")
            e(f"v_add_u32 v{52+ks}, s{S_T2}, v{V_KA+ks}")
        e(f"s_lshl_b32 s{S_T2}, s{S_J}, 13")
        e(f"s_sub_u32 s{S_T1}, {LDS_KT}, s{S_T2}")
        e(f"s_sub_u32 s{S_T2}, {LDS_VT-LDS_V}, s{S_T2}")
        for ks in range(4):
            e(f"v_add_u32 v{ks}, s{S_T1}, v{V_KA+ks}")
        for dt in range(8):
            e(f"v_add_u32 v{VTA+dt}, s{S_T2}, v{V_VA+dt}")
        order = cfg.get("order", "mid")
        pend = [dV0, dKT, dK1, dVT, dV1]
        nv = 8
        nearly = {"late": 0, "mid1": 1, "mid2": 2, "mid": 3, "early": 5}[order]
        for lines in pend[:nearly]:
            self.emit_all(lines)
            nv += sum(1 for x in lines if x.startswith("buffer_load"))
        pend = pend[nearly:]
        self.stamp()
        for k in range(8):
            e(f"s_waitcnt vmcnt({nv + 7 - k})")
            if k == 0:
                self.stamp()
            if k % 2 == 1 and pend:
                lines = pend.pop(0)
                self.emit_all(lines)
                nv += sum(1 for x in lines if x.startswith("buffer_load"))
            for x in range(4):
                src = 128 + 4 * k + x
                t = 176 + 2 * x
                e(f"v_lshlrev_b32 v{t}, 16, v{src}")
                e(f"v_and_b32 v{t+1}, 0xffff0000, v{src}")
            for x in range(4):
                t = 176 + 2 * x
                e(f"v_pk_mul_f32 v[{t}:{t+1}], v[{t}:{t+1}], s[{S_C}:{S_C+1}]")
            o = 184 + 4 * (k % 2)
            for x in range(4):
                t = 176 + 2 * x
                e(f"v_cvt_pk_bf16_f32 v{o+x}, v{t}, v{t+1}")
            e(f"ds_write_b128 v{4+k%4}, v[{o}:{o+3}] offset:{(k>>2)*4096+(k&3)*1024}")
        for lines in pend:
            self.emit_all(lines)
        e(f"s_waitcnt vmcnt(16) lgkmcnt(0)")
        e("s_barrier")
        self.stamp()
        for ks in range(4):
            e(f"ds_read_b128 a[{A_QA+4*ks}:{A_QA+4*ks+3}], v{48+ks}")
            e(self.k_read(ks, 0))
        for ks in range(4):
            e(self.k_read(4 + ks, 0))
        for ks in range(4):
            e(f"ds_read_b128 a[{A_QA+16+4*ks}:{A_QA+16+4*ks+3}], v{48+ks} offset:4096")
        for qb in range(2):
            for ks in range(4):
                e(f"ds_read_b128 a[{A_QB+16*qb+4*ks}:{A_QB+16*qb+4*ks+3}], v{52+ks} offset:{qb*4096}")
        e(f"s_mov_b32 s{S_T0}, {f32bits(-1e9*1.4426950408889634):#x}")
        bias1 = []
        for g in range(4):
            for k in range(2):
                src = 16 + 2 * g + k
                d0 = V_ST + 4 * g + 2 * k
                bias1.append(f"v_lshlrev_b32 v{d0}, 16, v{src}")
                bias1.append(f"v_and_b32 v{d0+1}, 0xffff0000, v{src}")
        for i in range(16):
            bias1.append(f"v_sub_f32 v{V_ST+i}, 1.0, v{V_ST+i}")
        self.emit_all(bias1[:16])
        mf = self.qk_mfmas("A", cin="0") + self.qk_mfmas("B", cin="0")
        pre = {}
        for k in range(4):
            pre[k] = [f"s_waitcnt lgkmcnt({min(15, 24-2*(k+1))})"]
        for k in range(4):
            pre[4 + k] = [f"s_waitcnt lgkmcnt({min(15, 24-8-(k+1))})"]
        for k in range(4):
            pre[8 + k] = [f"s_waitcnt lgkmcnt({24-12-(k+1)})"]
        pre[16] = ["s_waitcnt lgkmcnt(4)"]
        pre[24] = ["s_waitcnt lgkmcnt(0)"]
        gaps = {}

        def put(g, s):
            gaps.setdefault(g, []).append(s)
        for g, s in spread(bias1[16:], 0, 7):
            put(g, s)
        for g, s in spread(self.dma_k_stage(2), 8, 17):
            put(g, s)
        tA = self.blk("A")["IT"]
        bias2 = [f"v_fma_f32 v{V_ST+i}, v{V_ST+i}, s{S_T0}, v{tA+6+i//8}" for i in range(16)]
        for g, s in spread(self.ism_part1("A") + bias2, 19, 31):
            put(g, s)
        self.emit_sched(mf, gaps, pre, part=True)
        e(f"s_waitcnt vmcnt(8)")
        e("s_barrier")
        self.stamp()
        for i in range(8):
            e(self.k_read(i, 0, dst=A_KT, addr=0, off=0))
        for dt in range(8):
            self.emit_all(self.v_reads(dt, 0))
        p2a = self.ism_part2("A")
        self.emit_all(p2a[:16])
        mf = self.qk_mfmas("A", kf=A_KT, cin="self", dst=V_ST) + self.pv_mfmas("A")
        pre = {0: ["s_waitcnt lgkmcnt(15)"], 16: ["s_waitcnt lgkmcnt(15)", "s_nop 1"]}
        gaps = {}
        rd = [self.k_read(i, 1, dst=A_KT) for i in range(8)]
        for g, s in spread(p2a[16:], 0, 15):
            put(g, s)
        dm = self.dma_v_stage(2) + self.dma_k_stage(3)
        extra0 = []
        if cfg.get("defer0", 0):
            extra0 = [(0, f"s_add_u32 m0, s{S_WB}, 0"), (1, self.dma_k(0)), (1, self.dma_k(1)), (2, self.dma_k(2)), (2, self.dma_k(3)),
                      (3, f"s_add_u32 s{S_KOFF}, s{S_KOFF}, 16384"), (3, f"s_add_u32 m0, s{S_WB}, {LDS_V+3*16384}"),
                      (4, self.dma_v(0)), (4, self.dma_v(1)), (4, self.dma_v(2)), (4, self.dma_v(3)),
                      (5, f"s_add_u32 s{S_VOFF}, s{S_VOFF}, 16384")]
        else:
            dm += self.dma_k_stage(0) + self.dma_v_stage(3)
        npf = cfg["pf"]
        if npf:
            e(f"s_cmp_eq_u32 s{S_QH}, 0")
            e(f"s_cselect_b32 s{S_PF}, s{S_K}, s{S_V}")
            e(f"s_cselect_b32 s{S_PF+1}, s{S_K+1}, s{S_V+1}")
            e(f"s_mov_b32 s{S_PF+2}, 524288")
            e(f"s_mov_b32 s{S_PF+3}, 0x00020000")
            e(f"s_add_u32 s{S_PFO}, s{S_WB}, {5*16384}")
            e(f"v_mul_u32_u24 v{V_PF}, {cfg['pfstride']}, v{ln}")
            for k in range(npf):
                dm += [self.pf_load(), f"s_add_u32 s{S_PFO}, s{S_PFO}, 16384"]
        rdv = []
        for dt in range(8):
            rdv += self.v_reads(dt, 0, dst=A_VT, addr=VTA, off=0)
        for g, s in spread(self.ism_part1("B"), 16, 23):
            put(g, s)
        smt = self.sm_stream("A", src=V_ST)
        h0 = [s for g, s in smt if g < 17]
        h1 = [s for g, s in smt if g >= 17]
        h0n = []
        for k, s in enumerate(h0):
            h0n.append(s)
            if s.startswith("v_exp") and k + 1 < len(h0) and h0[k + 1].startswith("v_cvt"):
                h0n.append("s_nop 0")
        for g, s in spread(h0n, 24, 33):
            put(g, s)
        for k, s in enumerate(h1):
            put(34, s)
            if s.startswith("v_exp") and k + 1 < len(h1) and h1[k + 1].startswith("v_cvt"):
                put(34, "s_nop 0")
        for g, s in spread(rdv, 0, 15):
            put(g, s)
        for g, s in spread(rd, 16, 31):
            put(g, s)
        for g, s in spread(dm, 0, 33):
            put(g, s)
        self.emit_sched(mf, gaps, pre, part=True)
        e("s_waitcnt lgkmcnt(0)")
        self.stamp()
        carry = spread(self.ism_part2("B"), 0, 29) + extra0
        p1 = 1 if npf else 0
        carry = self.iteration(0, carry, vm=16 + npf, pva_vf=A_VT, first=True)
        carry = self.iteration(1, carry, vm=8 + npf + 8 + p1)
        carry = self.iteration(2, carry, vm=npf + 2 * (8 + p1))
        vms = 2 * (8 + p1) + p1
        t = carry
        m0 = 3
        while m0 < cfg.get("slowN", 0):
            for m in range(m0, m0 + 4):
                t = self.iteration(m, t, vm=vms)
            m0 += 4
        e(f"s_mov_b32 s{S_LOOP}, {(27 - m0) // 4}")
        if cfg.get("align"):
            self.L.append(f".p2align {cfg['align']}")
        self.label("L_loop")
        for m in range(m0, m0 + 4):
            le = None
            if m == m0 + 3:
                le = [f"s_sub_u32 s{S_LOOP}, s{S_LOOP}, 1", f"s_cmp_lg_u32 s{S_LOOP}, 0", "s_cbranch_scc1 L_loop"]
            t = self.iteration(m, t, loop_end=le, vm=vms)
        t = self.iteration(27, t, vm=vms)
        t = self.iteration(28, t, dma=False, vm=vms)
        self.stamp()
        t = self.iteration(29, t, dma=False, vm=(8 + p1) + p1)
        t = self.iteration(30, t, dma=False, vm=0, kread=False, bar=cfg["lastbar"])
        self.stamp()
        self.c("---- final PV")
        ds = [(g, s) for g, s in t if s.startswith("ds_")]
        sm = [(g, s) for g, s in t if not s.startswith("ds_")]
        self.emit_all([s for g, s in ds])
        e(f"v_lshlrev_b32 v32, 4, v{ln}")
        e(f"s_lshl_b32 s{S_T0}, s{S_W}, 14")
        e(f"s_xor_b32 s{S_T1}, s{S_T0}, 16384")
        e(f"v_add_u32 v33, s{S_T0}, v32")
        e(f"v_add_u32 v34, s{S_T1}, v32")
        e(f"s_lshl_b32 s{S_T0}, s{S_W}, 10")
        e(f"s_add_u32 s{S_T0}, s{S_T0}, {LDS_ML}")
        e(f"s_xor_b32 s{S_T1}, s{S_T0}, 1024")
        e(f"v_add_u32 v35, s{S_T0}, v32")
        e(f"v_add_u32 v36, s{S_T1}, v32")
        pa, pb = self.pv_mfmas("A", A_VT), self.pv_mfmas("B", A_VT)
        mf = pa[:9] + pb + pa[9:]
        gaps = {}
        sml = []
        for k, (g, s) in enumerate(sm):
            sml.append(s)
            if s.startswith("v_exp") and k + 1 < len(sm) and sm[k + 1][1].startswith("v_cvt"):
                sml.append("s_nop 0")
        for g, s in spread(sml, 0, 8):
            put(g, s)
        put(9, f"s_lshl_b32 s{S_T2}, s{S_W}, 14")
        put(9, f"s_add_u32 s{S_T2}, s{S_T2}, {LDS_V}")
        put(9, f"v_and_b32 v42, 15, v{ln}")
        put(10, f"v_lshrrev_b32 v43, 4, v{ln}")
        put(10, f"v_mul_u32_u24 v40, 272, v42")
        put(11, f"v_and_b32 v44, 1, v43")
        put(11, f"v_lshl_add_u32 v40, v44, 5, v40")
        put(12, f"v_lshrrev_b32 v44, 1, v43")
        put(31, f"v_lshl_add_u32 v40, v44, 4, v40")
        put(31, f"v_add_u32 v40, s{S_T2}, v40")
        put(32, f"v_mul_u32_u24 v41, 272, v43")
        put(32, f"v_lshl_add_u32 v41, v42, 4, v41")
        put(33, f"v_add_u32 v41, s{S_T2}, v41")
        put(20, f"v_mov_b32 v8, v{V_MB}")
        put(20, f"v_mov_b32 v9, v{V_MB+1}")
        put(21, f"v_mov_b32 v10, v{V_LB}")
        for r4 in range(16):
            mi = 9 + 9 * (r4 // 8) + r4 % 8
            put(mi + 4, f"ds_write_b128 v33, a[{A_OB+4*r4}:{A_OB+4*r4+3}] offset:{r4*1024}")
        put(30, f"v_mov_b32 v11, v{V_LB+4}")
        put(31, f"ds_write_b128 v35, v[8:11]")
        self.emit_sched(mf, gaps, pre={0: ["s_waitcnt lgkmcnt(0)"], 9: ["s_nop 1"]})
        e("s_waitcnt lgkmcnt(0)")
        e("s_barrier")
        self.stamp()
        e(f"ds_read_b128 v[8:11], v36")
        for r4 in range(16):
            e(f"ds_read_b128 v[{128+4*r4}:{128+4*r4+3}], v34 offset:{r4*1024}")
        e("s_waitcnt lgkmcnt(15)")
        for qb in range(2):
            e(f"v_max_f32 v{12+qb}, v{V_MA+qb}, v{8+qb}")
        for qb in range(2):
            e(f"v_sub_f32 v{24+qb}, v{V_MA+qb}, v{12+qb}")
            e(f"v_sub_f32 v{26+qb}, v{8+qb}, v{12+qb}")
        for qb in range(2):
            e(f"v_exp_f32 v{24+qb}, v{24+qb}")
            e(f"v_exp_f32 v{26+qb}, v{26+qb}")
        e("s_nop 0")
        for qb in range(2):
            e(f"v_mul_f32 v{28+qb}, v{V_LA+4*qb}, v{24+qb}")
        for qb in range(2):
            e(f"v_fma_f32 v{28+qb}, v{10+qb}, v{26+qb}, v{28+qb}")
        for qb in range(2):
            e(f"v_rcp_f32 v{28+qb}, v{28+qb}")
        e("s_nop 0")
        for qb in range(2):
            e(f"v_mul_f32 v{16+4*qb}, v{24+qb}, v{28+qb}")
            e(f"v_mul_f32 v{18+4*qb}, v{26+qb}, v{28+qb}")
        for qb in range(2):
            e(f"v_mov_b32 v{17+4*qb}, v{16+4*qb}")
            e(f"v_mov_b32 v{19+4*qb}, v{18+4*qb}")
        stf = cfg.get("stf", "")
        e(f"s_lshl_b32 s{S_T0}, s{S_W}, 13")
        e(f"s_add_u32 s{S_T1}, s{S_T0}, 4096")
        log = ["ml"] + [f"o{r}" for r in range(16)]
        def wait(tag):
            n = len(log) - 1 - log.index(tag)
            e(f"s_waitcnt lgkmcnt({min(15, n)})")
        for qb in range(2):
            fa, fb = 16 + 4 * qb, 18 + 4 * qb
            for dp in range(4):
                gi = 4 * qb + dp
                base = 32 * qb + 8 * dp
                r4 = base // 4
                wait(f"o{r4+1}")
                pk = 48 + 4 * (gi % 4)
                for k in range(0, 8, 2):
                    o = 128 + base + k
                    e(f"v_pk_mul_f32 v[{o}:{o+1}], v[{o}:{o+1}], v[{fb}:{fb+1}]")
                for k in range(0, 8, 2):
                    o = 128 + base + k
                    oa = V_OA + base + k
                    e(f"v_pk_fma_f32 v[{o}:{o+1}], v[{oa}:{oa+1}], v[{fa}:{fa+1}], v[{o}:{o+1}]")
                for k in range(4):
                    o = 128 + base + 2 * k
                    e(f"v_cvt_pk_bf16_f32 v{pk+k}, v{o}, v{o+1}")
                if qb == 1 and dp >= 2:
                    for k in (2 * (dp - 2), 2 * (dp - 2) + 1):
                        wait(f"r{k}")
                        e(f"buffer_store_dwordx4 v[{64+4*k}:{67+4*k}], v32, s[{S_O}:{S_O+3}], s{S_T0} offen offset:{k*1024}{stf}")
                else:
                    e("s_nop 1")
                e(f"v_permlane16_swap_b32 v{pk}, v{pk+2}")
                e(f"v_permlane16_swap_b32 v{pk+1}, v{pk+3}")
                e("s_nop 1")
                e(f"ds_write_b128 v40, v[{pk}:{pk+3}] offset:{qb*16*272+dp*64}")
                log.append(f"w{gi}")
                if qb == 1 and dp == 0:
                    for k in range(4):
                        e(f"ds_read_b128 v[{64+4*k}:{67+4*k}], v41 offset:{k*4*272}")
                        log.append(f"r{k}")
        for k in range(4, 8):
            e(f"ds_read_b128 v[{64+4*k}:{67+4*k}], v41 offset:{k*4*272}")
            log.append(f"r{k}")
        for k in range(4, 8):
            wait(f"r{k}")
            e(f"buffer_store_dwordx4 v[{64+4*k}:{67+4*k}], v32, s[{S_O}:{S_O+3}], s{S_T1} offen offset:{(k%4)*1024}{stf}")
        if self.stamps:
            self.stamp()
            e("s_waitcnt vmcnt(0)")
            self.stamp()
            e("s_memrealtime s[100:101]")
            e("s_waitcnt lgkmcnt(0)")
            if 'dbgst' in self.exp:
                e("s_cmp_lg_u32 s2, 100")
                e("s_cbranch_scc1 L_done")
                e(f"s_cmp_lg_u32 s{S_W}, 0")
                e("s_cbranch_scc1 L_done")
                e("s_mov_b32 s8, s18"); e("s_mov_b32 s9, s19"); e("s_mov_b32 s10, 256"); e("s_mov_b32 s11, 0x00020000")
                e("v_mov_b32 v4, 0")
                e(f"v_cmp_eq_u32 vcc, 0, v{ln}")
                e("s_and_saveexec_b64 s[12:13], vcc")
                for k in range(1, self.nstamp):
                    e(f"s_sub_u32 s3, s{72+2*k}, s72")
                    e("v_mov_b32 v6, s3")
                    e(f"buffer_store_dword v6, v4, s[8:11], 0 offen offset:{4*k}")
                e("s_sub_u32 s3, s100, s98")
                e("v_mov_b32 v6, s3")
                e(f"buffer_store_dword v6, v4, s[8:11], 0 offen offset:0")
            else:
                e("s_mov_b32 s8, s18"); e("s_mov_b32 s9, s19"); e("s_mov_b32 s10, 0x1000000"); e("s_mov_b32 s11, 0x00020000")
                e("s_lshl_b32 s3, s2, 2")
                e(f"s_add_u32 s3, s3, s{S_W}")
                e("s_lshl_b32 s3, s3, 7")
                e("v_mov_b32 v4, s3")
                e(f"v_cmp_eq_u32 vcc, 0, v{ln}")
                e("s_and_saveexec_b64 s[12:13], vcc")
                for k in range(self.nstamp):
                    e(f"s_sub_u32 s3, s{72+2*k}, s72")
                    e("v_mov_b32 v6, s3")
                    e(f"buffer_store_dword v6, v4, s[8:11], 0 offen offset:{4*k}")
                e("v_mov_b32 v6, s100")
                e(f"buffer_store_dword v6, v4, s[8:11], 0 offen offset:{4*16}")
                e("v_mov_b32 v6, s98")
                e(f"buffer_store_dword v6, v4, s[8:11], 0 offen offset:{4*17}")
        self.label("L_done")
        e("s_endpgm")
        for u, X, src in self.stubs:
            self.label(f"L_stub{u}")
            if src is not None:
                S = self.blk(X)["S"]
                for i in range(16):
                    e(f"v_mov_b32 v{S+i}, v{src+i}")
            e(f"s_call_b64 s[{S_RET}:{S_RET+1}], L_slow{X}")
            e(f"s_branch L_back{u}")
        self.slow_path("A")
        self.slow_path("B")
        self.label("L_codeend")
        L.append('.section .rodata,"a"')
        L.append(".p2align 6")
        L.append(f".amdhsa_kernel {KNAME}")
        L.append("  .amdhsa_next_free_vgpr 512")
        L.append("  .amdhsa_next_free_sgpr 102")
        L.append("  .amdhsa_accum_offset 256")
        L.append("  .amdhsa_group_segment_fixed_size 0")
        L.append("  .amdhsa_kernarg_size 72")
        L.append("  .amdhsa_user_sgpr_count 2")
        L.append("  .amdhsa_user_sgpr_kernarg_segment_ptr 1")
        L.append("  .amdhsa_system_sgpr_workgroup_id_x 1")
        L.append(".end_amdhsa_kernel")
        return "\n".join(L) + "\n"


if __name__ == "__main__":
    ap = argparse.ArgumentParser()
    ap.add_argument("-o", default="k10.s")
    ap.add_argument("--no-nt", action="store_true")
    ap.add_argument("--stamps", action="store_true")
    ap.add_argument("--no-pf", action="store_true")
    ap.add_argument("--exp", default="")
    ap.add_argument("--cfg", default="")
    a = ap.parse_args()
    cfg = eval("dict(" + a.cfg + ")") if a.cfg else None
    g = Gen(nt=not a.no_nt, stamps=a.stamps, code_pf=not a.no_pf, exp=a.exp, cfg=cfg)
    open(a.o, "w").write(g.build())
```
